```python
import torch

def _softmax(x, axis=-1):
    return torch.softmax(x, dim=axis)

def _gelu(x):
    return torch.nn.functional.gelu(x, approximate='tanh')

def _silu(x):
    return torch.nn.functional.silu(x)

def _sigmoid(x):
    return torch.sigmoid(x)

def _layernorm(x, axis=-1, eps=1e-05):
    m = x.mean(dim=axis, keepdim=True)
    v = x.var(dim=axis, keepdim=True, unbiased=False)
    return (x - m) / torch.sqrt(v + eps)

def _scatter_add(tgt, idx, src, axis=0):
    return tgt.clone().index_add_(axis, idx, src)

def _segment_sum(src, seg, n):
    out = torch.zeros((n,) + src.shape[1:], dtype=src.dtype)
    return out.index_add_(0, seg, src)

def _pad(x, pw):
    flat = tuple((v for pair in reversed(pw) for v in pair))
    return torch.nn.functional.pad(x, flat)
kernel_name = 'interleave_layers__ssm_conv_h3__memory_aug_recurrent_mem_tr__prompt'

def setup_inputs():

    _w = lambda a: (lambda t: t.to(torch.bfloat16) if t.is_floating_point() else t)(torch.as_tensor(a))

    def _A_setup():
        B, S, D = (1, 2048, 576)
        ks = 4
        return {'q': _w((lambda *s: torch.randn(*s, dtype=torch.bfloat16) * 0.05)(B, S, D)), 'k': _w((lambda *s: torch.randn(*s, dtype=torch.bfloat16) * 0.2)(B, S, D)), 'v': _w((lambda *s: torch.randn(*s, dtype=torch.bfloat16) * 0.2)(B, S, D)), 'shift_k': _w((lambda *s: torch.randn(*s, dtype=torch.bfloat16) * 0.2)(D, ks) * 0.5), 'ssm_k': _w((lambda *s: torch.randn(*s, dtype=torch.bfloat16) * 0.4)(D, S) * (1.0 / S ** 0.5)), 'ssm_D': _w((lambda *s: torch.randn(*s, dtype=torch.bfloat16) * 0.2)(D))}
    _A_in = _A_setup()

    def _B_setup():
        B, S, Dm = (1, 2048, 576)
        H, Dh = (32, 128)
        M, seg = (8, 32)
        seg = min(seg, S)
        S = S // seg * seg
        return {'x': _w((lambda *s: torch.randn(*s, dtype=torch.bfloat16) * 0.05)(B, S, Dm)), 'mem0': _w((lambda *s: torch.randn(*s, dtype=torch.bfloat16) * 0.2)(B, M, Dm)), 'Wq': _w((lambda *s: torch.randn(*s, dtype=torch.bfloat16) * 1.6)(Dm, H, Dh) * Dm ** (-0.5)), 'Wk': _w((lambda *s: torch.randn(*s, dtype=torch.bfloat16) * 1.6)(Dm, H, Dh) * Dm ** (-0.5)), 'Wv': _w((lambda *s: torch.randn(*s, dtype=torch.bfloat16) * 0.2)(Dm, H, Dh) * Dm ** (-0.5)), 'Wo': _w((lambda *s: torch.randn(*s, dtype=torch.bfloat16) * 0.2)(H, Dh, Dm) * (H * Dh) ** (-0.5)), 'seg_len': seg}
    _B_in = _B_setup()
    return {'A_q': _A_in['q'], 'A_k': _A_in['k'], 'A_v': _A_in['v'], 'A_shift_k': _A_in['shift_k'], 'A_ssm_k': _A_in['ssm_k'], 'A_ssm_D': _A_in['ssm_D'], 'B_x': _B_in['x'], 'B_mem0': _B_in['mem0'], 'B_Wq': _B_in['Wq'], 'B_Wk': _B_in['Wk'], 'B_Wv': _B_in['Wv'], 'B_Wo': _B_in['Wo'], 'B_seg_len': _B_in['seg_len']}

def reference(A_q, A_k, A_v, A_shift_k, A_ssm_k, A_ssm_D, B_x, B_mem0, B_Wq, B_Wk, B_Wv, B_Wo, B_seg_len):

    def _A_ref(q, k, v, shift_k, ssm_k, ssm_D):
        B, S, D = q.shape
        ks = shift_k.shape[-1]
        k_pad = _pad(k, ((0, 0), (ks - 1, 0), (0, 0)))
        k_shift = torch.zeros_like(k)
        for t in range(ks):
            k_shift = k_shift + k_pad[:, t:t + S, :] * shift_k[:, ks - 1 - t][None, None, :]
        kv = k_shift * v
        L = 2 * S
        kv_pad = _pad(kv, ((0, 0), (0, S), (0, 0)))
        kf_pad = _pad(ssm_k, ((0, 0), (0, S)))
        kv_f = (lambda x, axes=(-2, -1): torch.fft.rfft2(x.float(), dim=axes))(kv_pad[:, None, :, :], axes=(1, 2))
        kf_f = (lambda x, axes=(-2, -1): torch.fft.rfft2(x.float(), dim=axes))(kf_pad[:, None, :], axes=(1, 2))
        kf_f = (lambda x, *d: x.permute(*d))(kf_f, 1, 2, 0)
        y_f = kv_f * kf_f[None, :, :, :]
        y = (lambda x, s, axes=(-2, -1): torch.fft.irfft2(x, s=s, dim=axes).to(torch.bfloat16))(y_f, (1, L), axes=(1, 2))[:, 0, :S, :]
        y = y + kv * ssm_D[None, None, :]
        return q * y

    def _B_ref(x, mem0, Wq, Wk, Wv, Wo, seg_len):
        B, S, Dm = x.shape
        H, Dh = (Wq.shape[1], Wq.shape[2])
        M = mem0.shape[1]
        scale = Dh ** (-0.5)
        n_seg = S // seg_len
        L = M + seg_len
        idx = torch.arange(L)
        mask = (idx[:, None] < M) | (idx[:, None] >= idx[None, :])
        mem = mem0
        outs = []
        for s in range(n_seg):
            xs = x[:, s * seg_len:(s + 1) * seg_len, :].clone()
            h = torch.concatenate([mem, xs], axis=1)
            q = torch.einsum('btd,dhe->bhte', h, Wq)
            k = torch.einsum('btd,dhe->bhte', h, Wk)
            v = torch.einsum('btd,dhe->bhte', h, Wv)
            scores = torch.einsum('bhqe,bhke->bhqk', q, k) * scale
            scores = torch.where(mask[None, None], scores, -1000000000.0)
            p = _softmax(scores, axis=-1)
            o = torch.einsum('bhqk,bhke->bhqe', p, v)
            o = torch.einsum('bhte,hed->btd', o, Wo)
            mem = o[:, :M, :].clone()
            outs.append(o[:, M:, :])
        return torch.concatenate(outs, axis=1)
    x = A_q
    x = x + _A_ref(_layernorm(x, axis=-1), A_k, A_v, A_shift_k, A_ssm_k, A_ssm_D)
    x = x + _B_ref(_layernorm(x, axis=-1), B_mem0, B_Wq, B_Wk, B_Wv, B_Wo, B_seg_len)
    x = x + _A_ref(_layernorm(x, axis=-1), A_k, A_v, A_shift_k, A_ssm_k, A_ssm_D)
    x = x + _B_ref(_layernorm(x, axis=-1), B_mem0, B_Wq, B_Wk, B_Wv, B_Wo, B_seg_len)
    return x
```

```python
import re

REG_RE = re.compile(r'\b([vas])(\d+)\b|\b([vas])\[(\d+):(\d+)\]|\b(vcc|exec|m0)\b')

def regs_of(op):
    out = []
    for m in REG_RE.finditer(op):
        if m.group(1):
            out.append(m.group(1) + m.group(2))
        elif m.group(3):
            out += [m.group(3) + str(i) for i in range(int(m.group(4)), int(m.group(5)) + 1)]
        else:
            out.append(m.group(6))
    return out

TRANS = ('v_exp_f32', 'v_log_f32', 'v_rcp_f32', 'v_rsq_f32', 'v_sqrt_f32', 'v_sin_f32', 'v_cos_f32')

class Ins:
    def __init__(self, text, tok_def=None, tok_use=None):
        self.text = text
        self.tok_def = tok_def
        self.tok_use = tok_use or []
        self.label = None
        self.kind = 'other'
        self.defs, self.uses = [], []
        self.srcC, self.srcAB = [], []
        self.passes = 0
        self.cnt = None
        self.wide_store = []
        self.dpp = False
        self.pseudo = False
        t = text.split(';')[0].strip()
        if t.endswith(':'):
            self.label = t[:-1]; self.kind = 'label'; return
        if t == '' or t.startswith('.'):
            self.kind = 'dir'; self.pseudo = True; return
        sp = t.split(None, 1)
        mn = sp[0]; self.mn = mn
        rest = sp[1] if len(sp) > 1 else ''
        ops = [o.strip() for o in re.split(r',(?![^\[]*\])', rest)] if rest else []
        self.ops = ops
        R = [regs_of(o) for o in ops]
        allr = lambda lst: [r for x in lst for r in x]
        if mn.startswith('v_mfma') or mn.startswith('v_smfmac'):
            self.kind = 'mfma'
            self.passes = 8 if '32x32' in mn else 4
            self.defs = R[0]
            if mn.startswith('v_smfmac'):
                self.srcAB = R[1] + R[2] + R[3]; self.srcC = R[0]
            else:
                self.srcAB = R[1] + R[2]; self.srcC = R[3]
            self.uses = self.srcAB + self.srcC
        elif mn.startswith('v_'):
            self.kind = 'valu'
            self.dpp = ('_dpp' in mn) or any(k in rest for k in ('row_', 'quad_perm', 'wave_'))
            if mn.startswith('v_permlane') and 'swap' in mn:
                self.defs = R[0] + R[1]; self.uses = R[0] + R[1]
            elif mn.startswith('v_cmp'):
                self.defs = R[0]; self.uses = allr(R[1:])
            elif mn.startswith(('v_add_co', 'v_sub_co', 'v_addc_co', 'v_subb_co', 'v_subrev_co', 'v_mad_u64')):
                self.defs = R[0] + R[1]; self.uses = allr(R[2:])
            elif mn == 'v_nop':
                pass
            else:
                self.defs = R[0]; self.uses = allr(R[1:])
                if mn.startswith(('v_fmac', 'v_dot2c', 'v_writelane', 'v_pk_fmac')) or self.dpp:
                    self.uses = self.uses + R[0]
        elif mn.startswith('ds_'):
            self.kind = 'ds'; self.cnt = 'lgkm'
            if mn.startswith(('ds_read', 'ds_bpermute', 'ds_permute', 'ds_swizzle')):
                self.defs = R[0]; self.uses = allr(R[1:])
                if 'd16' in mn: self.uses = self.uses + R[0]
            else:
                self.uses = allr(R)
        elif mn.startswith(('buffer_', 'global_')):
            self.kind = 'vmem'; self.cnt = 'vm'
            if mn in ('buffer_wbl2', 'buffer_inv'):
                pass
            elif re.search(r'\blds\b', rest) or '_lds_' in mn:
                self.uses = allr(R) + ['m0']
                self.ldsdma = True
            elif '_load' in mn:
                self.defs = R[0]; self.uses = allr(R[1:])
                if 'd16' in mn: self.uses = self.uses + R[0]
            elif '_atomic' in mn:
                if re.search(r'\bsc0\b', rest):
                    self.defs = R[0]
                    self.uses = allr(R) if mn.startswith('buffer_') else allr(R[1:])
                else:
                    self.uses = allr(R)
            else:
                self.uses = allr(R)
                if 'x3' in mn or 'x4' in mn:
                    self.wide_store = R[0] if mn.startswith('buffer_') else R[1]
        elif mn.startswith(('s_load', 's_memtime', 's_memrealtime', 's_buffer_load', 's_atomic')):
            self.kind = 'smem'; self.cnt = 'smem'
            self.defs = R[0]; self.uses = allr(R[1:])
        elif mn.startswith('s_'):
            self.kind = 'salu'
            if mn in ('s_waitcnt', 's_nop', 's_barrier', 's_sleep', 's_endpgm', 's_setprio', 's_branch') or mn.startswith(('s_cbranch', 's_cmp', 's_bitcmp')):
                self.uses = allr(R) if mn.startswith(('s_cmp', 's_bitcmp')) else []
                if 'vcc' in mn: self.uses = ['vcc']
                if 'exec' in mn: self.uses = ['exec']
            else:
                self.defs = R[0]; self.uses = allr(R[1:])
                if 'saveexec' in mn: self.defs = self.defs + ['exec']
        else:
            raise ValueError('unknown instr: ' + text)

    def states(self):
        if self.kind in ('label', 'dir') or self.pseudo: return 0
        if self.mn == 's_nop': return int(self.ops[0], 0) + 1
        return 1

class Asm:
    def __init__(self):
        self.ins = []
        self.ntok = 0
        self.nlab = 0
    def __call__(self, text, tok=None):
        for line in text.split('\n'):
            line = line.strip()
            if line:
                self.ins.append(Ins(line, tok_def=tok))
    def tok(self, name='t'):
        self.ntok += 1
        return '#%s%d' % (name, self.ntok)
    def wait(self, *toks):
        i = Ins('; wait ' + ' '.join(toks), tok_use=list(toks))
        self.ins.append(i)
    def lab(self, name='L'):
        self.nlab += 1
        return '.%s_%d' % (name, self.nlab)

    def _succ(self):
        ins = self.ins
        labs = {x.label: i for i, x in enumerate(ins) if x.label}
        succ = []
        for i, x in enumerate(ins):
            s = []
            mn = getattr(x, 'mn', '')
            if mn == 's_endpgm':
                pass
            elif mn == 's_branch':
                s = [labs[x.ops[0]]]
            elif mn.startswith('s_cbranch'):
                s = [labs[x.ops[0]]] + ([i + 1] if i + 1 < len(ins) else [])
            elif i + 1 < len(ins):
                s = [i + 1]
            succ.append(s)
        return succ

    def insert_waits(self, entries):
        ins = self.ins
        succ = self._succ()
        labs = {x.label: i for i, x in enumerate(ins) if x.label}
        MAX = {'vm': 63, 'lgkm': 15}
        def need(x, st):
            w = {}
            for r in list(x.uses) + list(x.defs) + list(x.tok_use):
                if r in st:
                    c, n = st[r]
                    if (c == 'lgkm' or c == 'vm') and r in x.defs and r not in x.uses and x.cnt == c:
                        continue
                    if c == 'smem': c, n = 'lgkm', 0
                    if c == 'lgkm' and any(v[0] == 'smem' for v in st.values()): n = 0
                    w[c] = min(w.get(c, 99), n)
            return w
        def applyw(st, w):
            out = {}
            for r, (c, n) in st.items():
                if c == 'smem':
                    if w.get('lgkm', 99) == 0: continue
                elif c in w and n >= w[c]:
                    if not (c == 'lgkm' and w[c] > 0 and any(v[0] == 'smem' for v in st.values())):
                        continue
                out[r] = (c, n)
            return out
        def transfer(x, st):
            w = need(x, st)
            if w: st = applyw(st, w)
            if getattr(x, 'mn', '') == 's_waitcnt':
                ww = {}
                m = re.search(r'vmcnt\((\d+)\)', x.text)
                if m: ww['vm'] = int(m.group(1))
                m = re.search(r'lgkmcnt\((\d+)\)', x.text)
                if m: ww['lgkm'] = int(m.group(1))
                st = applyw(st, ww)
            if x.cnt:
                c = x.cnt
                ns = {}
                for r, (cc, n) in st.items():
                    if cc == c and c != 'smem':
                        n += 1
                        if n > MAX[c]: continue
                    ns[r] = (cc, n)
                for r in x.defs: ns[r] = (c, 0)
                if x.tok_def: ns[x.tok_def] = (c, 0)
                if c == 'smem' and not x.defs: ns['#smem'] = (c, 0)
                st = ns
            return w, st
        def merge(a, b):
            o = dict(a); ch = False
            for r, (c, n) in b.items():
                if r not in o: o[r] = (c, n); ch = True
                elif o[r][0] != c:
                    raise ValueError('reg %s pending on two counters' % r)
                elif n < o[r][1]: o[r] = (c, n); ch = True
            return o, ch
        inst = [None] * len(ins)
        work = []
        for e in entries:
            inst[labs[e]] = {}; work.append(labs[e])
        while work:
            i = work.pop()
            _, st = transfer(ins[i], inst[i])
            for s in succ[i]:
                if inst[s] is None:
                    inst[s] = st; work.append(s)
                else:
                    o, ch = merge(inst[s], st)
                    if ch: inst[s] = o; work.append(s)
        out = []
        for i, x in enumerate(ins):
            if inst[i] is not None:
                w, _ = transfer(x, inst[i])
                if w:
                    t = 's_waitcnt'
                    if 'vm' in w: t += ' vmcnt(%d)' % w['vm']
                    if 'lgkm' in w: t += ' lgkmcnt(%d)' % w['lgkm']
                    out.append(Ins(t))
            out.append(x)
        self.ins = out

    @staticmethod
    def _req(p, c):
        r = 0
        pd = set(p.defs)
        if p.kind == 'valu':
            pv = {x for x in pd if x[0] in 'va' and x != 'vcc'}
            ps = pd - pv
            if c.kind == 'mfma' and pv & set(c.uses): r = max(r, 2)
            if c.kind == 'valu':
                if pv & set(c.uses):
                    if c.dpp: r = max(r, 2)
                    if c.mn.startswith('v_permlane'): r = max(r, 2)
                    if c.mn.startswith(('v_readlane', 'v_readfirstlane')): r = max(r, 1)
                    if p.mn.startswith(TRANS): r = max(r, 1)
                    if 'op_sel' in p.text or 'sdwa' in p.text: r = max(r, 1)
                if ps & set(c.uses):
                    r = max(r, 4 if c.mn.startswith(('v_readlane', 'v_writelane')) else 2)
                if 'vcc' in ps and c.mn.startswith('v_div_fmas'): r = max(r, 4)
            if c.kind == 'vmem' and ps & set(c.uses): r = max(r, 5)
            if c.kind in ('vmem', 'ds') and p.mn.startswith(TRANS) and pv & set(c.uses): r = max(r, 1)
        if p.kind == 'mfma':
            big = 8 if p.passes == 4 else 12
            if c.kind == 'mfma':
                if pd & set(c.srcAB): r = max(r, big)
                if pd & set(c.srcC):
                    if not (list(c.srcC) == list(p.defs) and c.mn == p.mn):
                        r = max(r, big - 2)
                elif pd & set(c.defs):
                    r = max(r, big)
            elif c.kind in ('valu', 'vmem', 'ds'):
                if pd & (set(c.uses) | set(c.defs)): r = max(r, big)
                if c.kind == 'valu' and set(p.srcC) & set(c.defs): r = max(r, 3 if p.passes == 4 else 7)
        if p.kind == 'salu' and 'm0' in pd and 'm0' in c.uses and c.kind in ('vmem', 'ds'): r = max(r, 1)
        if p.wide_store and set(p.wide_store) & set(c.defs): r = max(r, 2)
        return r

    def insert_nops(self):
        ins = self.ins
        succ = self._succ()
        pred = [[] for _ in ins]
        for i, s in enumerate(succ):
            for j in s: pred[j].append(i)
        extra = [0] * len(ins)
        W = 12
        for i, c in enumerate(ins):
            if c.kind in ('label', 'dir') or c.pseudo or c.kind in ('salu', 'smem'): continue
            need = 0
            stack = [(j, 0) for j in pred[i]]
            seen = {}
            while stack:
                j, d = stack.pop()
                if d >= W: continue
                if j in seen and seen[j] <= d: continue
                seen[j] = d
                p = ins[j]
                if p.kind not in ('label', 'dir') and not p.pseudo:
                    q = self._req(p, c)
                    if q - d > need: need = q - d
                d2 = d + p.states() + (extra[j] if j < i else 0)
                for k in pred[j]: stack.append((k, d2))
            extra[i] = need
        out = []
        for i, x in enumerate(ins):
            if extra[i] > 0:
                out.append(Ins('s_nop %d' % (extra[i] - 1)))
            out.append(x)
        self.ins = out

    def finish(self, entries):
        self.insert_waits(entries)
        self.insert_nops()
        lines = []
        for x in self.ins:
            if x.label or x.kind == 'dir' and not x.text.startswith(';'): lines.append(x.text)
            elif x.pseudo: continue
            else: lines.append('  ' + x.text)
        return '\n'.join(lines) + '\n'

def vr(b, n=1, p='v'):
    return '%s%d' % (p, b) if n == 1 else '%s[%d:%d]' % (p, b, b + n - 1)
```

```python
FKV = 0x0000
FO  = 0x4000
FM  = 0x8000
FP  = 0xA000
FH  = 0xA800
FLAG_BYTES = 0xB000
MR  = 0x130000
MR_L = 0x8000
PR  = 0x10000
PR_L = 0x90000
RING_END = 0x140000
DBG = 0x180000
ROWS = 0x280000
Y   = 0x200000
X1  = Y + ROWS
H1  = X1 + ROWS
X2  = H1 + ROWS
H2  = X2 + ROWS
KVM = 0x1000000
O   = 0x2000000
KV  = 0x4000000
PP  = 0x8000000
PP_J = 589824
WS_BYTES = 268435456

def pi_col(kap, k):
    g, x = k >> 4, k & 15
    p, eta, b = x >> 2, (x >> 1) & 1, x & 1
    j = 2 * p + b
    if kap < 8:
        return 144 * (kap >> 1) + 16 * j + 8 * (kap & 1) + 2 * g + eta
    return 144 * g + 128 + 8 * eta + j
```

```python
import sys, math, struct
from asmlib import Asm, vr
import layout as L

NAME = 'interleave_layers__ssm_conv_h3__memory_aug_recurrent_mem_tr__prompt'
DEBUG = False
NSTEPS = 64
ROLES = 'cqor'

def fbits(x): return struct.unpack('<I', struct.pack('<f', x))[0]
CSC = fbits(128 ** -0.5 * math.log2(math.e))
SMF = 'v_smfmac_f32_16x16x64_bf16'
MF32 = 'v_mfma_f32_16x16x32_bf16'
MF16 = 'v_mfma_f32_16x16x16_bf16'
DPPF = 'row_mask:0xf bank_mask:0xf'

sW, sX, sT, sBUD = 's3', 's8', 's9', 's10'
WS, WQ, WK, WV, WO, OUT = 's[4:7]', 's[32:35]', 's[36:39]', 's[40:43]', 's[44:47]', 's[48:51]'

def srd(a, d, b, nbytes):
    a(f's_mov_b32 s{d}, s{b}\ns_mov_b32 s{d+1}, s{b+1}\ns_mov_b32 s{d+2}, {nbytes:#x}\ns_mov_b32 s{d+3}, 0x20000')

def weave(a, main, fill):
    def em(x):
        if callable(x): x()
        else: a(x)
    for x in fill.get(-1, []): em(x)
    for i, m in enumerate(main):
        em(m)
        for x in fill.get(i, []): em(x)
    for k in fill: assert k < len(main), k

def poll_flag(a, vdst, voff, soff, need, sleep=0, imm=0):
    lp, dn = a.lab('pl'), a.lab('pd')
    a(f'{lp}:')
    a(f'buffer_load_dword {vdst}, {voff}, {WS}, {soff} offen offset:{imm} sc1')
    a(f'v_cmp_gt_u32 vcc, {need}, {vdst}')
    a(f's_cbranch_vccz {dn}')
    if sleep: a(f's_sleep {sleep}')
    a(f's_sub_u32 {sBUD}, {sBUD}, 1\ns_cbranch_scc0 {lp}\ns_mov_b32 {sBUD}, 0')
    a(f'{dn}:')

def load_units(a, units, vTR, vLW, sLB, sTMP, tmp, NS=9):
    toks = {}
    def issue(u):
        s_, vo, sb, imm, _, _ = units[u]
        t = a.tok('u')
        for q in range(4):
            a(f's_add_u32 m0, {sLB}, {(u % NS) * 4096 + q * 1024}')
            a(f's_add_u32 {sTMP}, {sb}, {imm[q]:#x}')
            a(f'buffer_load_dwordx4 {vo}, {s_}, {sTMP} offen lds', tok=t)
        toks[u] = t
    for u in range(min(NS, len(units))): issue(u)
    for u in range(len(units)):
        a.wait(toks[u])
        d0, d1 = units[u][4], units[u][5]
        inplace = d0 == 'lds'
        if inplace: d0, d1 = ('v', tmp), ('v', tmp + 8)
        so = (u % NS) * 4096
        for T, d in enumerate((d0, d1)):
            if d is None: continue
            for rp in range(4):
                a(f'ds_read_b64_tr_b16 {vr(d[1] + 2 * rp, 2, d[0])}, {vTR} offset:{so + T * 32 + (rp & 1) * 256 + (rp >> 1) * 2048}')
        if inplace:
            a('s_waitcnt lgkmcnt(0)')
            for i in range(4):
                a(f'ds_write_b128 {vLW}, {vr(tmp + 4 * i, 4)} offset:{so + i * 1024}')
        if u + NS < len(units):
            a('s_waitcnt lgkmcnt(0)')
            issue(u + NS)
    a('s_waitcnt lgkmcnt(0)')

def mk_vTR(a, dst, t0, sLB):
    a(f'''v_lshrrev_b32 {dst}, 4, v0
    v_lshlrev_b32 {dst}, 9, {dst}
    v_bfe_u32 {t0}, v0, 2, 2
    v_lshl_add_u32 {dst}, {t0}, 6, {dst}
    v_and_b32 {t0}, 3, v0
    v_lshl_add_u32 {dst}, {t0}, 3, {dst}
    v_add_u32 {dst}, {sLB}, {dst}''')

def bits(a, dst, tmp, fields, const=None):
    first = True
    for lo, wd, sh in fields:
        if first:
            a(f'v_bfe_u32 {dst}, v0, {lo}, {wd}')
            if sh: a(f'v_lshlrev_b32 {dst}, {sh}, {dst}')
            first = False
        else:
            a(f'v_bfe_u32 {tmp}, v0, {lo}, {wd}')
            a(f'v_lshl_add_u32 {dst}, {tmp}, {sh}, {dst}')
    if const is not None: a(f'v_add_u32 {dst}, {const}, {dst}')

def xreduce(a, op, x, t):
    for sw in ('v_permlane16_swap_b32', 'v_permlane32_swap_b32'):
        a(f'v_mov_b32 {t}, {x}\n{sw} {t}, {x}\n{op} {x}, {x}, {t}')

def stamp(a, idx):
    if DEBUG: a(f's_memtime s[{64 + 2 * idx}:{65 + 2 * idx}]')

def gen_chain(a):
    MEM = 147456; QX = MEM + 9216; KXM = QX + 2048; SX = KXM + 2048; SEL = SX + 2048
    IDX, AR, LW, QR, QW, KR, OR, PW, L4, RR, RW, TA = ['v%d' % i for i in range(12)]
    SC = 12; KV = 16; AQ = 24; ACQ = 40; ACK = 48; Z = 56; X = 64; Yb = 72
    sL, sH, sLB, sTMP, sB0, sB1 = 's11', 's12', 's13', 's14', 's15', 's16'
    sS, sKV, sKO, sVO, sM0, sM1, sM2, sP0, sP1, sU, sKVM, sFM, sFK, sNEED, sSW, sOW, sMW, sPO, sT2 = ['s%d' % i for i in range(52, 64)] + ['s17', 's18', 's19', 's20', 's21', 's22', 's23']
    LO8, HFW, RWM = 's[24:25]', 's[26:27]', 's[28:29]'
    sC = 's30'
    a('chain:')
    a(f's_mov_b32 {sL}, {sX}\ns_mov_b32 {sH}, {sT}\ns_mul_i32 {sLB}, {sW}, 36864')
    vTR, vo1, vo2, vo3, t0 = 'v20', 'v21', 'v22', 'v23', 'v24'
    mk_vTR(a, vTR, t0, sLB)
    bits(a, LW, t0, [(0, 6, 4)], sLB)
    bits(a, vo1, t0, [(0, 2, 4), (2, 1, 17), (4, 2, 18), (3, 1, 13)])
    bits(a, vo2, t0, [(0, 2, 4), (2, 1, 13), (4, 2, 14), (3, 1, 16)])
    bits(a, vo3, t0, [(3, 1, 5), (5, 1, 4), (4, 1, 1), (2, 1, 0)])
    a(f'v_mul_u32_u24 {vo3}, 1152, {vo3}\nv_and_b32 {t0}, 3, v0\nv_lshl_add_u32 {vo3}, {t0}, 4, {vo3}')
    a(f's_lshl_b32 {sB0}, {sH}, 8\ns_lshl_b32 {sTMP}, {sW}, 6\ns_add_u32 {sB0}, {sB0}, {sTMP}')
    a(f's_mul_i32 {sB1}, {sH}, {128 * 1152}\ns_mul_i32 {sTMP}, {sW}, 288\ns_add_u32 {sB1}, {sB1}, {sTMP}')
    ldsu = [('q', 0), ('q', 3), ('q', 6), ('k', 8), ('k', 5), ('k', 2), ('o', 0, 0), ('o', 2, 0), ('o', 3, 1)]
    allu = [(m, k) for m in 'qkv' for k in range(9)] + [('o', p, k) for p in range(5) for k in range(2)]
    order = [u for u in allu if u not in ldsu] + ldsu
    pool = [('a', 8 * i) for i in range(32)] + [('v', 80 + 8 * i) for i in range(22)]
    W = {}
    units = []
    for ui, u in enumerate(order):
        if u[0] == 'o':
            keys = [('o', 2 * u[1], u[2]), ('o', 2 * u[1] + 1, u[2])]
            src = (WO, vo3, sB1, [(64 * u[2] + 4 * q) * 1152 + 64 * u[1] for q in range(4)])
        else:
            keys = [(u[0], 0, u[1]), (u[0], 1, u[1])]
            kap = u[1]
            s_ = {'q': WQ, 'k': WK, 'v': WV}[u[0]]
            if kap < 8: src = (s_, vo1, sB0, [(144 * (kap >> 1) + 8 * (kap & 1) + 2 * q) * 8192 for q in range(4)])
            else: src = (s_, vo2, sB0, [(144 * q + 128) * 8192 for q in range(4)])
        if u in ldsu:
            for T in range(2): W[keys[T]] = ('lds', (ui % 9) * 4096 + T * 2048)
            units.append(src + ('lds', None))
        else:
            d = []
            for T in range(2):
                if keys[T][0] == 'o' and keys[T][1] == 9: d.append(None)
                else:
                    W[keys[T]] = pool.pop(0); d.append(W[keys[T]])
            units.append(src + tuple(d))
    assert not pool
    load_units(a, units, vTR, LW, sLB, sTMP, 32)
    t0 = 'v24'
    bits(a, AR, t0, [(0, 6, 4)], MEM)
    bits(a, QR, t0, [(3, 1, 10), (4, 2, 7), (0, 3, 4)], QX)
    a(f's_lshl_b32 {sTMP}, {sW}, 9\ns_add_u32 {sTMP}, {sTMP}, {QX}')
    bits(a, QW, t0, [(2, 2, 7), (4, 2, 5), (0, 2, 1)], sTMP)
    bits(a, KR, t0, [(1, 1, 10), (4, 2, 7), (2, 2, 5), (0, 1, 4)], KXM)
    bits(a, OR, t0, [(0, 1, 9), (4, 2, 7), (1, 3, 4)], QX)
    bits(a, PW, t0, [(3, 1, 10), (1, 2, 8), (4, 2, 5), (0, 1, 4)])
    bits(a, L4, t0, [(0, 6, 2)])
    bits(a, RR, t0, [(3, 1, 2), (4, 2, 0)])
    a(f'v_mul_u32_u24 {RR}, 9216, {RR}\nv_and_b32 {t0}, 7, v0\nv_lshl_add_u32 {RR}, {t0}, 4, {RR}')
    bits(a, RW, t0, [(0, 3, 4), (4, 2, 3)])
    a(f'v_and_b32 {t0}, 7, v0\nv_mov_b32 v25, 0x3f80\nv_mov_b32 v26, 0x3f800000')
    for p in range(4):
        a(f'''v_cmp_eq_u32 vcc, {2 * p}, {t0}
        v_cndmask_b32 v{28 + p}, 0, v25, vcc
        v_cmp_eq_u32 vcc, {2 * p + 1}, {t0}
        v_cndmask_b32 v{28 + p}, v{28 + p}, v26, vcc''')
    a(f'ds_write_b128 {AR}, v[28:31] offset:{SEL - MEM}')
    a(f'v_and_b32 {t0}, 1, v0\nv_mul_u32_u24 {t0}, 0xaaaa, {t0}\nv_add_u32 {IDX}, 0x4444, {t0}')
    a(f's_mov_b32 s24, 0x00ff00ff\ns_mov_b32 s25, 0x00ff00ff')
    a(f's_cmp_ge_u32 {sW}, 2\ns_cselect_b32 s26, 0xff00ff00, s24\ns_mov_b32 s27, s26')
    a(f's_mov_b32 s28, 0x00ff00ff\ns_mov_b32 s29, 0')
    a(f's_mov_b32 {sC}, {CSC:#x}')
    a(f's_mov_b32 {sS}, 0')
    a(f's_lshl_b32 {sKV}, {sL}, 11\ns_add_u32 {sKV}, {sKV}, {sH}\ns_lshl_b32 {sKVM}, {sKV}, 12\ns_lshl_b32 {sKV}, {sKV}, 14')
    a(f's_add_u32 {sKV}, {sKV}, {L.KV:#x}\ns_add_u32 {sKVM}, {sKVM}, {L.KVM:#x}')
    a(f's_and_b32 {sKO}, {sW}, 1\ns_lshl_b32 {sKO}, {sKO}, 12\ns_lshr_b32 {sTMP}, {sW}, 1\ns_lshl_b32 {sTMP}, {sTMP}, 11\ns_add_u32 {sKO}, {sKO}, {sTMP}\ns_sub_u32 {sKO}, {sKO}, {MEM}')
    a(f's_lshl_b32 {sVO}, {sW}, 11\ns_add_u32 {sVO}, {sVO}, {(8192 - MEM) & 0xffffffff:#x}')
    a(f's_mul_i32 {sM0}, {sL}, {L.MR_L:#x}\ns_add_u32 {sM0}, {sM0}, {L.MR:#x}\ns_add_u32 {sM1}, {sM0}, 9216\ns_add_u32 {sM2}, {sM0}, 18432')
    a(f's_mul_i32 {sP0}, {sL}, {L.PR_L:#x}\ns_add_u32 {sP0}, {sP0}, {L.PR:#x}\ns_add_u32 {sP1}, {sP0}, 294912')
    a(f's_mul_i32 {sPO}, {sH}, 9216')
    a(f'''s_lshl_b32 {sU}, {sH}, 1
    s_add_u32 {sU}, {sU}, {sW}
    s_lshr_b32 {sTMP}, {sH}, 2
    s_add_u32 {sTMP}, {sTMP}, 64
    s_cmp_eq_u32 {sW}, 2
    s_cselect_b32 {sU}, {sTMP}, {sU}
    s_lshl_b32 {sU}, {sU}, 7
    s_and_b32 {sTMP}, {sH}, 3
    s_cmp_eq_u32 {sTMP}, 0
    s_cselect_b32 {sTMP}, 3, 2
    s_cmp_ge_u32 {sW}, {sTMP}
    s_cselect_b32 {sU}, -1, {sU}''')
    a(f's_lshl_b32 {sFM}, {sL}, 5\ns_add_u32 {sFM}, {sFM}, {sH}\ns_lshl_b32 {sFK}, {sFM}, 8\ns_lshl_b32 {sFM}, {sFM}, 7')
    a(f's_lshl_b32 {sTMP}, {sW}, 2\ns_add_u32 {sFM}, {sFM}, {sTMP}\ns_add_u32 {sFM}, {sFM}, {L.FM:#x}\ns_add_u32 {sFK}, {sFK}, {L.FKV:#x}')
    a(f's_and_b32 {sSW}, {sW}, 1\ns_lshl_b32 {sSW}, {sSW}, 10\ns_lshr_b32 {sTMP}, {sW}, 1\ns_lshl_b32 {sTMP}, {sTMP}, 9\ns_sub_u32 {sSW}, {sSW}, {sTMP}\ns_add_u32 {sSW}, {sSW}, {SX - QX}')
    a(f's_lshl_b32 {sOW}, {sW}, 9\ns_lshl_b32 {sMW}, {sW}, 11')
    a(f'v_and_b32 {TA}, 12, {L4}\ns_mov_b32 {sNEED}, 1')
    poll_flag(a, 'v12', TA, sFK, sNEED, sleep=2)
    a(f's_add_u32 {sTMP}, {sKV}, {sKO}')
    def loadK():
        a(f'buffer_load_dwordx4 {vr(KV, 4)}, {AR}, {WS}, {sTMP} offen sc1')
        a(f'buffer_load_dwordx4 {vr(KV + 4, 4)}, {AR}, {WS}, {sTMP} offen offset:1024 sc1')
    loadK()

    def ldfrag(key, buf):
        off = W[key][1]
        return [f'ds_read_b128 {vr(buf, 4)}, {LW} offset:{off}', f'ds_read_b128 {vr(buf + 4, 4)}, {LW} offset:{off + 1024}']
    passes = [('q', list(range(9)), ACQ), ('k', list(range(8, -1, -1)), ACK), ('v', list(range(9)), Z)]
    seq = [(m, T, k, acc) for m, ks, acc in passes for k in ks for T in range(2)]
    lf = [i for i, (m, T, k, acc) in enumerate(seq) if W[(m, T, k)][0] == 'lds']
    bufs = [X, Yb, Z]
    fbuf = {pos: bufs[i % 3] for i, pos in enumerate(lf)}
    aslot = lambda k: AQ + 4 * (k % 4)
    main = []
    for i, (m, T, k, acc) in enumerate(seq):
        w = W[(m, T, k)]
        b = vr(fbuf[i], 8) if w[0] == 'lds' else vr(w[1], 8, w[0])
        main.append(f'{SMF} {vr(acc + 4 * T, 4)}, {vr(aslot(k), 4)}, {b}, {IDX}')
    fill = {i: [] for i in range(-1, len(main))}
    rdA = lambda k: f'ds_read_b128 {vr(aslot(k), 4)}, {AR} offset:{k * 1024}'
    fill[-1] += [rdA(k) for k in range(4)]
    for k in range(5): fill[2 * k + 1].append(rdA(k + 4))
    for i, k in enumerate(range(8, 3, -1)): fill[18 + 2 * i + 1].append(rdA(k - 4))
    for k in range(5): fill[36 + 2 * k + 1].append(rdA(k + 4))
    for i in range(3, len(lf)):
        fill[lf[i - 3]] += ldfrag(seq[lf[i]][:3], fbuf[lf[i]])

    LOOP, XIT = a.lab('cloop'), a.lab('cexit')
    a(f'{LOOP}:')
    for i in range(3):
        for x in ldfrag(seq[lf[i]][:3], fbuf[lf[i]]): a(x)
    for r in range(ACQ, ACQ + 16): a(f'v_mov_b32 v{r}, 0')
    a(f's_add_u32 {sTMP}, {sM0}, {sMW}\ns_sub_u32 {sTMP}, {sTMP}, {MEM}')
    a(f's_lshr_b32 {sT2}, {sMW}, 3\ns_add_u32 {sT2}, {sT2}, 8192')
    a(f'v_add_u32 v14, {sMW}, {AR}\nv_add_u32 v15, {sT2}, {L4}\nv_add_u32 v15, {MEM}, v15\ns_add_u32 {sT2}, {sT2}, {sM0}')
    lp, dn = a.lab('hb'), a.lab('hbd')
    a(f'{lp}:')
    a(f'''buffer_load_dwordx4 v[24:27], {AR}, {WS}, {sTMP} offen sc1
    buffer_load_dwordx4 v[28:31], {AR}, {WS}, {sTMP} offen offset:1024 sc1
    buffer_load_dword v32, {L4}, {WS}, {sT2} offen sc1
    v_max3_u32 v33, v24, v26, v28
    v_max3_u32 v33, v33, v30, v32
    v_cmp_eq_u32 vcc, -1, v33
    s_cbranch_vccz {dn}
    s_sub_u32 {sBUD}, {sBUD}, 1
    s_cbranch_scc0 {lp}
    s_mov_b32 {sBUD}, 0''')
    a(f'{dn}:')
    a(f'''ds_write_b128 v14, v[24:27]
    ds_write_b128 v14, v[28:31] offset:1024
    ds_write_b32 v15, v32
    s_waitcnt lgkmcnt(0)
    s_barrier''')
    stamp(a, 0)
    def epi(acc, off):
        return [f'v_add_f32 v{acc}, v{acc}, v{acc+1}', f'v_add_f32 v{acc+2}, v{acc+2}, v{acc+3}',
                f'v_add_f32 v{acc+4}, v{acc+4}, v{acc+5}', f'v_add_f32 v{acc+6}, v{acc+6}, v{acc+7}',
                f'v_cvt_pk_bf16_f32 v{acc}, v{acc}, v{acc+2}', f'v_cvt_pk_bf16_f32 v{acc+1}, v{acc+4}, v{acc+6}'] + ([] if off is None else [
                f'ds_write_b16 {QW}, v{acc} offset:{off}', f'ds_write_b16_d16_hi {QW}, v{acc} offset:{off+16}',
                f'ds_write_b16 {QW}, v{acc+1} offset:{off+8}', f'ds_write_b16_d16_hi {QW}, v{acc+1} offset:{off+24}'])
    fill[2] += [f's_add_u32 {sNEED}, {sS}, 1', f's_and_b32 {sT2}, {sNEED}, 1', f's_lshl_b32 {sT2}, {sT2}, 7', f's_add_u32 {sT2}, {sT2}, {sFK}',
                f's_lshr_b32 {sNEED}, {sNEED}, 1', f's_add_u32 {sNEED}, {sNEED}, 1', f's_min_u32 {sNEED}, {sNEED}, 32',
                f'v_and_b32 {TA}, 12, {L4}', f'buffer_load_dword v15, {TA}, {WS}, {sT2} offen sc1']
    fmflag = [f'v_mov_b32 v13, {sS}', 'v_mov_b32 v14, 0', 's_mov_b64 exec, 1', f'buffer_store_dword v13, v14, {WS}, {sFM} offen sc1', 's_mov_b64 exec, -1']
    fill[4] += fmflag
    e = epi(ACQ, 0)
    tq, tk = a.tok('q'), a.tok('k')
    fill[20] += e[0:2]; fill[21] += e[2:4]; fill[22] += e[4:6]; fill[23] += e[6:9] + [lambda x=e[9]: a(x, tok=tq)]
    fill[26] += [lambda: a.wait(tq), 's_barrier', f'ds_read_b128 {vr(ACQ, 4)}, {QR}', f'ds_read_b128 {vr(ACQ + 4, 4)}, {QR} offset:512']
    def flagchk():
        ok = a.lab('fk')
        a(f'v_cmp_gt_u32 vcc, {sNEED}, v15\ns_cbranch_vccz {ok}')
        poll_flag(a, 'v15', TA, sT2, sNEED)
        a(f'{ok}:')
        a(f'v_lshlrev_b32 {TA}, 4, {L4}\ns_lshl_b32 {sT2}, {sMW}, 1\ns_add_u32 {sT2}, {sT2}, {sKV}\ns_add_u32 {sT2}, {sT2}, 0x80000')
        a(f'buffer_load_dword {TA}, {TA}, {WS}, {sT2} offen sc1')
    fill[16].append(flagchk)
    fill[30] += [f'{MF32} {vr(SC, 4)}, {vr(KV, 4)}, {vr(ACQ, 4)}, 0', f'{MF32} {vr(SC, 4)}, {vr(KV + 4, 4)}, {vr(ACQ + 4, 4)}, {vr(SC, 4)}',
                 f's_add_u32 {sTMP}, {sKV}, {sVO}']
    fill[31].append(loadK)
    for i in range(4): fill[31 + i] += [f'v_mov_b32 v{Z + 2 * i}, 0', f'v_mov_b32 v{Z + 2 * i + 1}, 0']
    fill[35] += [f'v_add_u32 v{X}, {sSW}, {QR}', f's_mov_b64 exec, {HFW}', f'ds_write_b128 v{X}, {vr(SC, 4)}', 's_mov_b64 exec, -1']
    e = epi(ACK, KXM - QX)
    fill[38] += e[0:2]; fill[39] += e[2:4]; fill[40] += e[4:6]
    S0, S1 = X, X + 4
    fill[41] += e[6:9] + [lambda x=e[9]: a(x, tok=tk)]
    fill[44] += [lambda: a.wait(tk), 's_barrier',
                 f'ds_read_b128 {vr(ACK, 4)}, {KR}', f'ds_read_b128 {vr(ACK + 4, 4)}, {KR} offset:512',
                 f'ds_read_b128 {vr(S0, 4)}, {QR} offset:{SX - QX}', f'ds_read_b128 {vr(S1, 4)}, {QR} offset:{SX - QX + 512}']
    fill[48] += [f'{MF32} {vr(SC, 4)}, {vr(ACK, 4)}, {vr(ACQ, 4)}, 0', f'{MF32} {vr(SC, 4)}, {vr(ACK + 4, 4)}, {vr(ACQ + 4, 4)}, {vr(SC, 4)}']
    fill[49] += [f'v_add_f32 v{S0 + r}, v{S0 + r}, v{S1 + r}' for r in range(2)]
    fill[50] += [f'v_add_f32 v{S0 + r}, v{S0 + r}, v{S1 + r}' for r in range(2, 4)]
    EM, MX, TT = S1, S1 + 1, S1 + 2
    tkm = a.tok('km')
    def kmstore():
        sk = a.lab('ks')
        a(f's_sub_u32 {sTMP}, {sKVM}, {KXM}\ns_cmp_lg_u32 {sW}, 2\ns_cbranch_scc1 {sk}a')
        a(f'buffer_store_dwordx4 {vr(ACK, 4)}, {KR}, {WS}, {sTMP} offen sc1', tok=tkm)
        a(f'{sk}a:\ns_cmp_lg_u32 {sW}, 3\ns_cbranch_scc1 {sk}b')
        a(f'buffer_store_dwordx4 {vr(ACK + 4, 4)}, {KR}, {WS}, {sTMP} offen offset:512 sc1', tok=tkm)
        a(f'{sk}b:')
    fill[51] += [f'v_max3_f32 v{MX}, v{S0}, v{S0+1}, v{S0+2}', kmstore]
    fill[52] += [f'v_add_f32_dpp v{EM}, v{SC+2}, v{SC} row_ror:8 row_mask:0xf bank_mask:0x3',
                 f'v_add_f32_dpp v{EM}, v{SC+1}, v{SC+3} row_ror:8 row_mask:0xf bank_mask:0xc']
    fill[52] += [f'v_max3_f32 v{MX}, v{MX}, v{S0+3}, v{EM}']
    fill[53] += [f'v_max_f32_dpp v{MX}, v{MX}, v{MX} row_ror:8 {DPPF}', f'v_mov_b32 v{TT}, v{MX}']
    fill[53] += [f'v_permlane16_swap_b32 v{TT}, v{MX}', f'v_max_f32 v{MX}, v{MX}, v{TT}', f'v_mov_b32 v{TT}, v{MX}']
    weave(a, main, fill)
    stamp(a, 1)
    P, PMa, PMb = Yb, Yb + 4, Yb + 6
    ON = SC
    a(f'v_mov_b32 v{PMa+1}, 0\nv_mov_b32 v{PMb}, 0')
    a(f'v_permlane32_swap_b32 v{TT}, v{MX}\nv_max_f32 v{MX}, v{MX}, v{TT}\nv_mul_f32 v{MX}, {sC}, v{MX}')
    for r in list(range(S0, S0 + 4)) + [EM]: a(f'v_fma_f32 v{r}, v{r}, {sC}, -v{MX}')
    for r in list(range(S0, S0 + 4)) + [EM]: a(f'v_exp_f32 v{r}, v{r}')
    e = epi(Z, None)
    for x in e: a(x)
    a(f'v_cvt_pk_bf16_f32 v{P}, v{S0}, v{S0+1}\nv_cvt_pk_bf16_f32 v{P+1}, v{S0+2}, v{S0+3}')
    a(f'v_mov_b32_dpp v{TT}, v{EM} row_ror:8 {DPPF}')
    for r in range(4): a(f'v_mov_b32 v{ON + r}, 0x3f803f80')
    a(f'v_mov_b32_dpp v{P+2}, v{P} row_ror:8 {DPPF}\nv_mov_b32_dpp v{P+3}, v{P+1} row_ror:8 {DPPF}')
    a(f'v_cvt_pk_bf16_f32 v{PMa}, v{EM}, v{TT}\nv_cvt_pk_bf16_f32 v{PMb+1}, v{EM}, v{TT}')
    O0, O1, SU = X, X + 4, Z + 4
    oseq = [(0, 0), (1, 0), (0, 1), (1, 1), (2, 0), (3, 0), (2, 1), (3, 1), (4, 0), (5, 0), (4, 1), (5, 1), (8, 0), (8, 1), (6, 0), (7, 0), (6, 1), (7, 1)]
    olf = [i for i, (T, k) in enumerate(oseq) if W[('o', T, k)][0] == 'lds']
    obuf = {pos: [KV, Yb][i % 2] for i, pos in enumerate(olf)}
    a(f'''{MF32} {vr(SU, 4)}, {vr(ON, 4)}, {vr(P, 4)}, 0
    {MF32} {vr(O0, 4)}, {vr(KV, 4)}, {vr(P, 4)}, 0
    {MF32} {vr(O1, 4)}, {vr(KV + 4, 4)}, {vr(P, 4)}, 0''')
    a(f'v_lshlrev_b32 {TA}, 1, {L4}\ns_add_u32 {sTMP}, {sKVM}, {sOW}')
    a(f'buffer_store_dwordx2 {vr(Z, 2)}, {TA}, {WS}, {sTMP} offen offset:2048 sc1', tok=tkm)
    for x in ldfrag(('o',) + oseq[olf[0]], obuf[olf[0]]): a(x)
    a(f'''{MF16} {vr(SU, 4)}, {vr(ON, 2)}, {vr(PMa, 2)}, {vr(SU, 4)}
    {MF16} {vr(O0, 4)}, {vr(Z, 2)}, {vr(PMa, 2)}, {vr(O0, 4)}
    {MF16} {vr(O1, 4)}, {vr(Z, 2)}, {vr(PMb, 2)}, {vr(O1, 4)}''')
    for x in ldfrag(('o',) + oseq[olf[1]], obuf[olf[1]]): a(x)
    a(f'v_rcp_f32 v{SU}, v{SU}')
    a(f'v_add_u32 {TA}, {sOW}, {QR}')
    for r in range(8): a(f'v_mul_f32 v{X + r}, v{X + r}, v{SU}')
    for r in range(4): a(f'v_cvt_pk_bf16_f32 v{X + r}, v{X + 2 * r}, v{X + 2 * r + 1}')
    a(f's_mov_b64 exec, {LO8}\nds_write_b128 {TA}, {vr(X, 4)}\ns_mov_b64 exec, -1')
    oacc = lambda T: (AQ + 4 * T) if T < 8 else SC
    for r in range(AQ, AQ + 16): a(f'v_mov_b32 v{r}, 0')
    a('s_waitcnt lgkmcnt(0)\ns_barrier')
    a(f'ds_read_b128 {vr(Z, 4)}, {OR}\nds_read_b128 {vr(Z + 4, 4)}, {OR} offset:1024')
    for r in range(AQ + 16, AQ + 32): a(f'v_mov_b32 v{r}, 0')
    for r in range(4): a(f'v_mov_b32 v{SC + r}, 0')
    stamp(a, 2)
    main = []
    for i, (T, k) in enumerate(oseq):
        w = W[('o', T, k)]
        b = vr(obuf[i], 8) if w[0] == 'lds' else vr(w[1], 8, w[0])
        main.append(f'{SMF} {vr(oacc(T), 4)}, {vr(Z + 4 * k, 4)}, {b}, {IDX}')
    fill = {i: [] for i in range(len(main))}
    for i in range(2, len(olf)): fill[olf[i - 2]] += ldfrag(('o',) + oseq[olf[i]], obuf[olf[i]])
    def oepi(p):
        A, B = oacc(2 * p), oacc(2 * p + 1)
        return [f'v_add_f32 v{A}, v{A}, v{A+1}', f'v_add_f32 v{A+2}, v{A+2}, v{A+3}', f'v_add_f32 v{B}, v{B}, v{B+1}', f'v_add_f32 v{B+2}, v{B+2}, v{B+3}',
                f'v_cvt_pk_bf16_f32 v{AQ + p}, v{A}, v{B}', f'v_cvt_pk_bf16_f32 v{AQ + 4 + p}, v{A+2}, v{B+2}']
    for p, st in ((0, 6), (1, 10), (2, 14)):
        e = oepi(p)
        fill[st] += e[0:2]; fill[st + 1] += e[2:4]; fill[st + 2] += e[4:6]
    fill[4] += [f's_add_u32 {sTMP}, {sP0}, {sPO}', f's_lshr_b32 {sT2}, {sMW}, 3', f's_add_u32 {sT2}, {sT2}, {sTMP}', f's_add_u32 {sT2}, {sT2}, 8192', f's_add_u32 {sTMP}, {sTMP}, {sMW}',
                f'v_lshrrev_b32 {TA}, 1, {L4}']
    fill[17] += [f'v_add_f32 v{SC}, v{SC}, v{SC+1}', f'v_add_f32 v{SC+2}, v{SC+2}, v{SC+3}', f'v_cvt_pk_bf16_f32 v{SC}, v{SC}, v{SC+2}',
                 f'buffer_store_short v{SC}, {TA}, {WS}, {sT2} offen', f'buffer_store_short_d16_hi v{SC}, {TA}, {WS}, {sT2} offen offset:128']
    weave(a, main, fill)
    for x in oepi(3): a(x)
    a(f'buffer_store_dwordx4 {vr(AQ, 4)}, {PW}, {WS}, {sTMP} offen\nbuffer_store_dwordx4 {vr(AQ + 4, 4)}, {PW}, {WS}, {sTMP} offen offset:128')
    stamp(a, 3)
    a(f's_add_u32 {sS}, {sS}, 1')
    a(f's_cmp_eq_u32 {sS}, {NSTEPS}\ns_cbranch_scc1 {XIT}')
    a(f's_add_u32 {sKV}, {sKV}, 0x80000\ns_add_u32 {sKVM}, {sKVM}, 0x20000\ns_add_u32 {sTMP}, {sKV}, {sKO}')
    loadK()
    nr = a.lab('nr')
    a(f's_cmp_eq_u32 {sU}, -1\ns_cbranch_scc1 {nr}')
    a(f'ds_read_b128 v[52:55], {AR} offset:{SEL - MEM}')
    a(f's_add_u32 {sTMP}, {sP0}, {sU}\ns_add_u32 {sT2}, {sTMP}, {8 * 9216}\ns_add_u32 {sB0}, {sTMP}, {16 * 9216}\ns_add_u32 {sB1}, {sTMP}, {24 * 9216}')
    so = [sTMP, sT2, sB0, sB1]
    lp, dn = a.lab('ha'), a.lab('had')
    a(f'{lp}:')
    for i in range(4): a(f'buffer_load_dwordx4 {vr(32 + 4 * i, 4)}, {RR}, {WS}, {so[i]} offen sc1')
    for i in range(4): a(f'{MF32} v[48:51], v[52:55], {vr(32 + 4 * i, 4)}, {"0" if i == 0 else "v[48:51]"}')
    a(f'''v_cmp_u_f32 vcc, v48, v48
    s_cbranch_vccz {dn}
    s_sub_u32 {sBUD}, {sBUD}, 1
    s_cbranch_scc0 {lp}
    s_mov_b32 {sBUD}, 0''')
    a(f'{dn}:')
    for r in range(4): a(f'v_add_f32_dpp v{48 + r}, v{48 + r}, v{48 + r} row_ror:8 {DPPF}')
    a(f'v_cvt_pk_bf16_f32 v48, v48, v49\nv_cvt_pk_bf16_f32 v49, v50, v51')
    a(f's_add_u32 {sNEED}, {sM1}, {sU}\ns_mov_b64 exec, {RWM}')
    a(f'buffer_store_dwordx2 v[48:49], {RW}, {WS}, {sNEED} offen')
    for r in range(4): a(f'v_mov_b32 v{52 + r}, -1')
    a(f's_add_u32 {sNEED}, {sM0}, {sU}')
    a(f'buffer_store_dwordx2 v[52:53], {RW}, {WS}, {sNEED} offen\ns_mov_b64 exec, -1')
    for r in range(4): a(f'v_mov_b32 v{52 + r}, -1')
    for i in range(4): a(f'buffer_store_dwordx4 v[52:55], {RR}, {WS}, {so[i]} offen')
    a(f'{nr}:')
    stamp(a, 4)
    if DEBUG:
        a('s_waitcnt lgkmcnt(0)')
        for i in range(5): a(f'v_mov_b32 v{32 + i}, s{64 + 2 * i}')
        a(f's_lshl_b32 {sTMP}, {sL}, 5\ns_add_u32 {sTMP}, {sTMP}, {sH}\ns_lshl_b32 {sTMP}, {sTMP}, 2\ns_add_u32 {sTMP}, {sTMP}, {sW}\ns_lshl_b32 {sTMP}, {sTMP}, 6\ns_add_u32 {sTMP}, {sTMP}, {sS}\ns_lshl_b32 {sTMP}, {sTMP}, 5\ns_add_u32 {sTMP}, {sTMP}, {L.DBG:#x}')
        a(f'v_mov_b32 v37, 0\ns_mov_b64 exec, 1\nbuffer_store_dwordx4 v[32:35], v37, {WS}, {sTMP} offen\nbuffer_store_dword v36, v37, {WS}, {sTMP} offen offset:16\ns_mov_b64 exec, -1')
    a(f's_mov_b32 {sTMP}, {sM0}\ns_mov_b32 {sM0}, {sM1}\ns_mov_b32 {sM1}, {sM2}\ns_mov_b32 {sM2}, {sTMP}')
    a(f's_mov_b32 {sTMP}, {sP0}\ns_mov_b32 {sP0}, {sP1}\ns_mov_b32 {sP1}, {sTMP}')
    a(f's_branch {LOOP}')
    a(f'{XIT}:\ns_waitcnt vmcnt(0)')
    for x in fmflag: a(x)
    a('s_endpgm')

def gen_qkv(a):
    HB = 0; PK = 36864; PKS = 24576
    vA, vHD, vKM, TA = 'v0', 'v1', 'v2', 'v3'
    sL, sH, sLB, sTMP, sB0, sPAR = 's11', 's12', 's13', 's14', 's15', 's16'
    sJ, sHS, sKV, sKVM, sO, sFKV, sFO, sFM, sNEED, sT2, sPW, sPR, sLBH, sC, sJA, sQO, sVO = ['s%d' % i for i in range(52, 64)] + ['s17', 's18', 's19', 's20', 's21']
    MK = 64
    a('qkv:')
    a(f'''s_sub_u32 {sH}, {sX}, 2
    s_lshl_b32 {sH}, {sH}, 3
    s_and_b32 {sTMP}, {sT}, 7
    s_add_u32 {sH}, {sH}, {sTMP}
    s_lshr_b32 {sL}, {sT}, 4
    s_bfe_u32 {sPAR}, {sT}, 0x10003
    s_mul_i32 {sLB}, {sW}, 36864''')
    vTR, vo1, t0 = 'v20', 'v21', 'v24'
    mk_vTR(a, vTR, t0, sLB)
    bits(a, vo1, t0, [(0, 2, 4), (2, 4, 13)])
    a(f's_lshl_b32 {sB0}, {sH}, 8\ns_lshl_b32 {sTMP}, {sW}, 6\ns_add_u32 {sB0}, {sB0}, {sTMP}')
    pool = [('a', 8 * i) for i in range(32)] + [('v', 80 + 8 * i) for i in range(22)]
    W = {}; units = []
    for m in 'kvq':
        for kap in range(9):
            d = [pool.pop(0), pool.pop(0)]
            for T in range(2):
                for hh in range(2): W[(m, T, 2 * kap + hh)] = (d[T][0], d[T][1] + 4 * hh)
            units.append(({'q': WQ, 'k': WK, 'v': WV}[m], vo1, sB0, [(64 * kap + 16 * q) * 8192 for q in range(4)], d[0], d[1]))
    load_units(a, units, vTR, None, sLB, sTMP, None)
    wf = lambda m, T, k: vr(W[(m, T, k)][1], 4, W[(m, T, k)][0])
    a(f's_and_b32 {sTMP}, {sW}, 1\ns_lshl_b32 {sTMP}, {sTMP}, 4\nv_and_b32 v24, 15, v0\nv_add_u32 v24, {sTMP}, v24\nv_lshrrev_b32 v25, 4, v0\nv_lshlrev_b32 v25, 2, v25\nv_sub_u32 v24, v24, v25')
    for kt in range(2):
        for r in range(4):
            a(f'v_cmp_le_i32 s[{MK + 8 * kt + 2 * r}:{MK + 8 * kt + 2 * r + 1}], {16 * kt + r}, v24')
    a(f'v_and_b32 {vHD}, 15, v0\nv_mul_u32_u24 {vHD}, 1152, {vHD}\nv_lshrrev_b32 v24, 4, v0\nv_lshl_add_u32 {vHD}, v24, 4, {vHD}')
    bits(a, vKM, t0, [(4, 2, 7), (2, 2, 5), (0, 1, 4)])
    a(f'v_lshlrev_b32 {vA}, 4, v0')
    a(f's_mov_b32 {sC}, {CSC:#x}\ns_mov_b32 {sJ}, 0\ns_mov_b32 {sJA}, 0')
    a(f'''s_mul_i32 {sHS}, {sL}, {L.H2 - L.H1:#x}
    s_add_u32 {sHS}, {sHS}, {L.H1:#x}
    s_mul_i32 {sTMP}, {sPAR}, 36864
    s_add_u32 {sHS}, {sHS}, {sTMP}
    s_and_b32 {sT2}, {sW}, 1
    s_mul_i32 {sTMP}, {sT2}, 18432
    s_add_u32 {sHS}, {sHS}, {sTMP}
    s_lshl_b32 {sLBH}, {sT2}, 10
    s_lshl_b32 {sQO}, {sT2}, 12
    s_lshr_b32 {sT2}, {sW}, 1
    s_mul_i32 {sTMP}, {sT2}, 576
    s_add_u32 {sHS}, {sHS}, {sTMP}
    s_mul_i32 {sTMP}, {sT2}, 18432
    s_add_u32 {sLBH}, {sLBH}, {sTMP}
    s_lshl_b32 {sVO}, {sT2}, 12''')
    a(f'''s_lshl_b32 {sTMP}, {sL}, 6
    s_add_u32 {sTMP}, {sTMP}, {sPAR}
    s_lshl_b32 {sTMP}, {sTMP}, 5
    s_add_u32 {sTMP}, {sTMP}, {sH}
    s_lshl_b32 {sKV}, {sTMP}, 14
    s_add_u32 {sKV}, {sKV}, {L.KV:#x}
    s_lshl_b32 {sKVM}, {sTMP}, 12
    s_add_u32 {sKVM}, {sKVM}, {L.KVM:#x}
    s_lshl_b32 {sO}, {sTMP}, 13
    s_add_u32 {sO}, {sO}, {L.O:#x}
    s_lshl_b32 {sT2}, {sW}, 2
    s_lshl_b32 {sTMP}, {sL}, 5
    s_add_u32 {sTMP}, {sTMP}, {sH}
    s_lshl_b32 {sFM}, {sTMP}, 7
    s_add_u32 {sFM}, {sFM}, {L.FM:#x}
    s_lshl_b32 {sTMP}, {sTMP}, 1
    s_add_u32 {sTMP}, {sTMP}, {sPAR}
    s_lshl_b32 {sFKV}, {sTMP}, 7
    s_add_u32 {sFKV}, {sFKV}, {sT2}
    s_add_u32 {sFKV}, {sFKV}, {L.FKV:#x}
    s_lshl_b32 {sTMP}, {sL}, 1
    s_add_u32 {sTMP}, {sTMP}, {sPAR}
    s_lshl_b32 {sTMP}, {sTMP}, 5
    s_add_u32 {sTMP}, {sTMP}, {sH}
    s_lshl_b32 {sFO}, {sTMP}, 7
    s_add_u32 {sFO}, {sFO}, {sT2}
    s_add_u32 {sFO}, {sFO}, {L.FO:#x}
    s_mov_b32 {sPW}, {PK}
    s_mov_b32 {sPR}, {PK}''')
    a(f's_add_u32 {sO}, {sO}, {sVO}\ns_lshr_b32 {sTMP}, {sQO}, 2\ns_add_u32 {sO}, {sO}, {sTMP}')
    a('s_barrier')
    LOOP, NOH, NOA, NOP_, XIT = [a.lab(x) for x in ('ql', 'qnh', 'qna', 'qnp', 'qx')]
    th = a.tok('h')
    a(f'{LOOP}:')
    a(f's_cmp_ge_u32 {sJ}, 32\ns_cbranch_scc1 {NOH}')
    sk = a.lab('qs')
    a(f's_cmp_eq_u32 {sL}, 0\ns_cbranch_scc1 {sk}')
    a(f's_lshl_b32 {sNEED}, {sJ}, 1\ns_add_u32 {sNEED}, {sNEED}, {sPAR}\ns_add_u32 {sNEED}, {sNEED}, 1')
    a(f'v_bfe_u32 {TA}, {vA}, 2, 7\ns_mov_b32 {sTMP}, {L.FH:#x}')
    poll_flag(a, 'v8', TA, sTMP, sNEED, sleep=1)
    a(f'{sk}:')
    for i in range(9):
        a(f's_add_u32 m0, {sLBH}, {HB + i * 1984}')
        a(f'buffer_load_dwordx4 {vHD}, {WS}, {sHS} offen offset:{i * 64} sc1 lds', tok=th)
    a(f's_add_u32 {sHS}, {sHS}, {2 * 36864}')
    a(f'{NOH}:')
    a(f's_cmp_lt_u32 {sJ}, 3\ns_cbranch_scc1 {NOA}')
    a(f's_lshl_b32 {sNEED}, {sJA}, 1\ns_add_u32 {sNEED}, {sNEED}, {sPAR}\ns_add_u32 {sNEED}, {sNEED}, 1')
    a(f'v_add_u32 v4, {sPR}, {vA}\nv_add_u32 v5, {sQO}, v4')
    for k in range(4): a(f'ds_read_b128 {vr(24 + 4 * k, 4)}, v5 offset:{k * 1024}')
    for k in range(8): a(f'ds_read_b128 {vr(40 + 4 * k, 4)}, v4 offset:{8192 + k * 1024}')
    for kt in range(2):
        for k in range(4):
            a(f'{MF32} {vr(72 + 4 * kt, 4)}, {vr(40 + 16 * kt + 4 * k, 4)}, {vr(24 + 4 * k, 4)}, {"0" if k == 0 else vr(72 + 4 * kt, 4)}')
    a(f'v_add_u32 v5, {sVO}, v4')
    for k in range(4): a(f'ds_read_b128 {vr(56 + 4 * k, 4)}, v5 offset:{16384 + k * 1024}')
    a(f'v_bfe_u32 {TA}, {vA}, 2, 4')
    poll_flag(a, 'v8', TA, sFM, sNEED, sleep=1)
    for k in range(4): a(f'buffer_load_dwordx4 {vr(8 + 4 * k, 4)}, {vKM}, {WS}, {sKVM} offen offset:{k * 512} sc1')
    a(f'v_lshrrev_b32 {TA}, 1, {vA}\ns_lshr_b32 {sTMP}, {sVO}, 2\ns_add_u32 {sTMP}, {sTMP}, {sKVM}')
    for i in range(2): a(f'buffer_load_dwordx2 {vr(4 + 2 * i, 2)}, {TA}, {WS}, {sTMP} offen offset:{2048 + i * 512} sc1')
    a('v_mov_b32 v44, 0xff800000')
    for i in range(8): a(f'v_cndmask_b32 v{72 + i}, v44, v{72 + i}, s[{MK + 2 * i}:{MK + 2 * i + 1}]')
    a('v_max3_f32 v45, v72, v73, v74\nv_max3_f32 v45, v45, v75, v76\nv_max3_f32 v45, v45, v77, v78\nv_max_f32 v45, v45, v79')
    for r in range(4): a(f'v_mov_b32 v{48 + r}, 0x3f803f80')
    for k in range(4):
        a(f'{MF32} v[40:43], {vr(8 + 4 * k, 4)}, {vr(24 + 4 * k, 4)}, {"0" if k == 0 else "v[40:43]"}')
    a('v_max3_f32 v45, v45, v40, v41')
    xreduce(a, 'v_max_f32', 'v45', 'v46')
    a(f'v_mul_f32 v45, {sC}, v45')
    sv = list(range(72, 80)) + [40, 41]
    for r in sv: a(f'v_fma_f32 v{r}, v{r}, {sC}, -v45')
    for r in sv: a(f'v_exp_f32 v{r}, v{r}')
    for i in range(4): a(f'v_cvt_pk_bf16_f32 v{8 + i}, v{72 + 2 * i}, v{73 + 2 * i}')
    a('v_cvt_pk_bf16_f32 v12, v40, v41\nv_mov_b32 v13, 0\nv_mov_b32 v14, 0\nv_cvt_pk_bf16_f32 v15, v40, v41')
    a(f'{MF32} v[52:55], v[48:51], v[8:11], 0')
    for e in range(4): a(f'{MF32} {vr(24 + 4 * e, 4)}, {vr(56 + 4 * e, 4)}, v[8:11], 0')
    a(f'{MF16} v[52:55], v[48:49], v[12:13], v[52:55]')
    for e in range(4): a(f'{MF16} {vr(24 + 4 * e, 4)}, {vr(4 + 2 * (e >> 1), 2)}, {vr(12 + 2 * (e & 1), 2)}, {vr(24 + 4 * e, 4)}')
    a('v_rcp_f32 v52, v52')
    for r in range(16): a(f'v_mul_f32 v{24 + r}, v{24 + r}, v52')
    for r in range(8): a(f'v_cvt_pk_bf16_f32 v{24 + r}, v{24 + 2 * r}, v{25 + 2 * r}')
    a(f'buffer_store_dwordx4 v[24:27], {vA}, {WS}, {sO} offen sc1\nbuffer_store_dwordx4 v[28:31], {vA}, {WS}, {sO} offen offset:2048 sc1')
    a(f's_add_u32 {sJA}, {sJA}, 1\nv_mov_b32 v8, {sJA}\nv_mov_b32 v9, 0')
    a(f's_add_u32 {sO}, {sO}, {2 * 32 * 8192:#x}\ns_add_u32 {sKVM}, {sKVM}, {2 * 32 * 4096:#x}')
    a(f's_add_u32 {sPR}, {sPR}, {PKS}\ns_cmp_eq_u32 {sPR}, {PK + 3 * PKS}\ns_cselect_b32 {sPR}, {PK}, {sPR}')
    a(f's_waitcnt vmcnt(0)\ns_mov_b64 exec, 1\nbuffer_store_dword v8, v9, {WS}, {sFO} offen sc1\ns_mov_b64 exec, -1')
    a(f'{NOA}:')
    a(f's_cmp_ge_u32 {sJ}, 32\ns_cbranch_scc1 {NOP_}')
    a.wait(th)
    a('s_barrier')
    AK, AV, AQ_, HR = 8, 24, 40, 56
    hs = lambda k, rt: vr(HR + 8 * (k % 3) + 4 * rt, 4)
    rdH = lambda k: [f'ds_read_b128 {hs(k, rt)}, {vA} offset:{HB + ((k % 18) * 2 + rt) * 1024}' for rt in range(2)]
    main = []; fill = {-1: rdH(0) + rdH(1) + rdH(2)}
    for k in range(18):
        for rt in range(2):
            for T in range(2):
                d = vr(AK + 8 * rt + 4 * T, 4)
                main.append(f'{MF32} {d}, {wf("k", T, k)}, {hs(k, rt)}, {"0" if k == 0 else d}')
            for T in range(2):
                d = vr(AV + 8 * T + 4 * rt, 4)
                main.append(f'{MF32} {d}, {hs(k, rt)}, {wf("v", T, k)}, {"0" if k == 0 else d}')
        fill[len(main) - 1] = rdH(k + 3)
    for k in range(18):
        for rt in range(2):
            for T in range(2):
                d = vr(AQ_ + 8 * rt + 4 * T, 4)
                main.append(f'{MF32} {d}, {wf("q", T, k)}, {hs(k, rt)}, {"0" if k == 0 else d}')
        fill[len(main) - 1] = rdH(k + 3) if k + 3 < 18 else []
    tkv = a.tok('kv')
    pos = 148
    def add(p, x): fill.setdefault(p, []).append(x)
    add(146, f's_lshl_b32 {sTMP}, {sW}, 10'); add(146, f's_add_u32 {sT2}, {sTMP}, {sPW}'); add(146, f'v_add_u32 v4, {sT2}, {vA}')
    add(147, f's_add_u32 {sT2}, {sT2}, {sTMP}'); add(147, f'v_add_u32 v5, {sT2}, {vA}')
    add(147, f's_add_u32 {sT2}, {sTMP}, {sKV}'); add(147, f's_add_u32 {sB0}, {sT2}, 4096'); add(147, f's_add_u32 {sTMP}, {sT2}, {sTMP}'); add(147, f's_add_u32 {sTMP}, {sTMP}, 8192')
    for b in range(4):
        base = AK + 8 * b
        for r in range(4):
            add(pos, f'v_cvt_pk_bf16_f32 v{base + r}, v{base + 2 * r}, v{base + 2 * r + 1}'); pos += 1
        if b < 2:
            add(pos, lambda base=base, b=b: a(f'buffer_store_dwordx4 {vr(base, 4)}, {vA}, {WS}, {[sT2, sB0][b]} offen sc1', tok=tkv))
            add(pos, f'ds_write_b128 v4, {vr(base, 4)} offset:{8192 + b * 4096}')
        else:
            add(pos, lambda base=base, b=b: a(f'buffer_store_dwordx4 {vr(base, 4)}, {vA}, {WS}, {sTMP} offen offset:{(b - 2) * 1024} sc1', tok=tkv))
            add(pos, f'ds_write_b128 v5, {vr(base, 4)} offset:{16384 + (b - 2) * 1024}')
        pos += 1
    weave(a, main, fill)
    a(f's_add_u32 {sT2}, {sJ}, 1\nv_mov_b32 v8, {sT2}\nv_mov_b32 v9, 0')
    a.wait(tkv)
    a(f's_mov_b64 exec, 1\nbuffer_store_dword v8, v9, {WS}, {sFKV} offen sc1\ns_mov_b64 exec, -1')
    for b in range(2):
        base = AQ_ + 8 * b
        for r in range(4): a(f'v_cvt_pk_bf16_f32 v{base + r}, v{base + 2 * r}, v{base + 2 * r + 1}')
        a(f'ds_write_b128 v4, {vr(base, 4)} offset:{b * 4096}')
    a(f's_add_u32 {sKV}, {sKV}, {2 * 32 * 16384:#x}')
    a(f's_add_u32 {sPW}, {sPW}, {PKS}\ns_cmp_eq_u32 {sPW}, {PK + 3 * PKS}\ns_cselect_b32 {sPW}, {PK}, {sPW}')
    a('s_waitcnt lgkmcnt(0)\ns_barrier')
    a(f'{NOP_}:')
    a(f's_add_u32 {sJ}, {sJ}, 1\ns_cmp_lt_u32 {sJ}, 35\ns_cbranch_scc1 {LOOP}')
    a('s_endpgm')

def gen_op(a):
    vA, vST, TA, vB = 'v0', 'v1', 'v2', 'v3'
    sL, sKG, sLB, sTMP, sB0, sCG = 's11', 's12', 's13', 's14', 's15', 's16'
    sS, sO, sFO, sFP, sPP, sNEED, sT2, sBUF = ['s%d' % i for i in range(52, 60)]
    a('op:')
    a(f'''s_sub_u32 {sL}, {sX}, 6
    s_mul_i32 {sKG}, {sT}, 43
    s_lshr_b32 {sKG}, {sKG}, 7
    s_mul_i32 {sTMP}, {sKG}, 3
    s_sub_u32 {sCG}, {sT}, {sTMP}
    s_mul_i32 {sLB}, {sW}, 36864''')
    vTR, vo1, t0 = 'v20', 'v21', 'v24'
    mk_vTR(a, vTR, t0, sLB)
    bits(a, vo1, t0, [(4, 1, 4), (5, 1, 2), (2, 2, 0)])
    a(f'v_mul_u32_u24 {vo1}, 1152, {vo1}\nv_and_b32 {t0}, 3, v0\nv_lshl_add_u32 {vo1}, {t0}, 4, {vo1}')
    a(f's_mul_i32 {sB0}, {sKG}, {512 * 1152}\ns_mul_i32 {sTMP}, {sCG}, 384\ns_add_u32 {sB0}, {sB0}, {sTMP}\ns_mul_i32 {sTMP}, {sW}, 96\ns_add_u32 {sB0}, {sB0}, {sTMP}')
    W = {}; units = []; nxt = 0
    for k64 in range(8):
        for pr in range(2):
            d = []
            for T in (2 * pr, 2 * pr + 1):
                if T == 3: d.append(None); continue
                d.append(('a', nxt))
                for hh in range(2): W[(T, 2 * k64 + hh)] = nxt + 4 * hh
                nxt += 8
            units.append((WO, vo1, sB0, [(64 * k64 + 32 * (q >> 1) + 8 * (q & 1)) * 1152 + 64 * pr for q in range(4)], d[0], d[1]))
    load_units(a, units, vTR, None, sLB, sTMP, None)
    a(f'v_and_b32 {vST}, 15, v0\nv_mul_u32_u24 {vST}, 768, {vST}\nv_lshrrev_b32 v24, 4, v0\nv_lshl_add_u32 {vST}, v24, 4, {vST}')
    a(f'v_and_b32 {TA}, 3, v0\nv_lshlrev_b32 {TA}, 2, {TA}\nv_lshlrev_b32 {vA}, 4, v0')
    a(f'''s_mov_b32 {sS}, 0
    s_lshl_b32 {sT2}, {sKG}, 2
    s_add_u32 {sT2}, {sT2}, {sW}
    s_lshl_b32 {sTMP}, {sL}, 11
    s_add_u32 {sTMP}, {sTMP}, {sT2}
    s_lshl_b32 {sO}, {sTMP}, 13
    s_add_u32 {sO}, {sO}, {L.O:#x}
    s_lshl_b32 {sTMP}, {sL}, 6
    s_add_u32 {sTMP}, {sTMP}, {sT2}
    s_lshl_b32 {sFO}, {sTMP}, 7
    s_add_u32 {sFO}, {sFO}, {L.FO:#x}
    s_lshl_b32 {sFP}, {sT}, 2
    s_add_u32 {sFP}, {sFP}, {sW}
    s_lshl_b32 {sFP}, {sFP}, 2
    s_lshl_b32 {sTMP}, {sL}, 9
    s_add_u32 {sFP}, {sFP}, {sTMP}
    s_add_u32 {sFP}, {sFP}, {L.FP:#x}
    s_mul_i32 {sPP}, {sL}, {64 * L.PP_J:#x}
    s_mul_i32 {sTMP}, {sT}, {32 * 768}
    s_add_u32 {sPP}, {sPP}, {sTMP}
    s_mul_i32 {sTMP}, {sW}, 192
    s_add_u32 {sPP}, {sPP}, {sTMP}
    s_add_u32 {sPP}, {sPP}, {L.PP:#x}
    s_mov_b32 {sBUF}, 0
    s_barrier''')
    LOOP = a.lab('ol')
    a(f'{LOOP}:')
    a(f's_lshr_b32 {sNEED}, {sS}, 1\ns_add_u32 {sNEED}, {sNEED}, 1\ns_and_b32 {sTMP}, {sS}, 1\ns_lshl_b32 {sTMP}, {sTMP}, 12\ns_add_u32 {sTMP}, {sTMP}, {sFO}')
    poll_flag(a, 'v8', TA, sTMP, sNEED, sleep=1)
    a(f's_lshl_b32 {sT2}, {sW}, 13\ns_add_u32 {sT2}, {sT2}, {sBUF}\ns_add_u32 {sTMP}, {sO}, 4096')
    for i in range(8):
        if i % 4 == 0: a(f's_add_u32 m0, {sT2}, {i * 1024}')
        a(f'buffer_load_dwordx4 {vA}, {WS}, {[sO, sTMP][i // 4]} offen offset:{(i % 4) * 1024} sc1 lds')
    a(f'v_add_u32 {vB}, {sBUF}, {vA}')
    a('s_waitcnt vmcnt(0)\ns_barrier')
    AC, HR = 8, 32
    hs = lambda k, rt: vr(HR + 8 * (k % 3) + 4 * rt, 4)
    rd = lambda k: [f'ds_read_b128 {hs(k, rt)}, {vB} offset:{(k * 2 + rt) * 1024}' for rt in range(2)]
    main = []; fill = {-1: rd(0) + rd(1) + rd(2)}
    for k in range(16):
        for rt in range(2):
            for T in range(3):
                d = vr(AC + 12 * rt + 4 * T, 4)
                main.append(f'{MF32} {d}, {vr(W[(T, k)], 4, "a")}, {hs(k, rt)}, {"0" if k == 0 else d}')
        fill[len(main) - 1] = rd(k + 3) if k + 3 < 16 else []
    weave(a, main, fill)
    a(f's_add_u32 {sTMP}, {sPP}, 12288')
    for rt in range(2):
        for T in range(3):
            a(f'buffer_store_dwordx4 {vr(AC + 12 * rt + 4 * T, 4)}, {vST}, {WS}, {[sPP, sTMP][rt]} offen offset:{T * 64}')
    a(f's_add_u32 {sS}, {sS}, 1\nv_mov_b32 v4, {sS}\nv_mov_b32 v5, 0')
    a(f's_add_u32 {sO}, {sO}, {32 * 8192:#x}\ns_add_u32 {sPP}, {sPP}, {L.PP_J:#x}\ns_xor_b32 {sBUF}, {sBUF}, 32768')
    a(f's_waitcnt vmcnt(0)\ns_mov_b64 exec, 1\nbuffer_store_dword v4, v5, {WS}, {sFP} offen\ns_mov_b64 exec, -1')
    a(f's_cmp_lt_u32 {sS}, 64\ns_cbranch_scc1 {LOOP}')
    a('s_endpgm')

def wsum(a, x, t):
    for r in (8, 4, 2, 1): a(f'v_add_f32_dpp {x}, {x}, {x} row_ror:{r} {DPPF}')
    xreduce(a, 'v_add_f32', x, t)

def rnd(a, regs, pk):
    for i in range(0, len(regs), 2):
        a(f'v_cvt_pk_bf16_f32 v{pk + i // 2}, v{regs[i]}, v{regs[i + 1]}')
    for i in range(0, len(regs), 2):
        a(f'v_lshlrev_b32 v{regs[i]}, 16, v{pk + i // 2}\nv_and_b32 v{regs[i + 1]}, 0xffff0000, v{pk + i // 2}')

def rnd1(a, x):
    a(f'v_cvt_pk_bf16_f32 {x}, {x}, {x}\nv_and_b32 {x}, 0xffff0000, {x}')

def layernorm(a, X, Q, PKR, T, live):
    t0, t1, t2, t3 = ['v%d' % (T + i) for i in range(4)]
    a(f'v_add_f32 {t0}, v{X}, v{X + 1}')
    for i in range(2, 12): a(f'v_add_f32 {t0}, {t0}, v{X + i}')
    wsum(a, t0, t1)
    a(f'v_mul_f32 {t0}, {fbits(1 / 576):#x}, {t0}')
    for i in range(12): a(f'v_sub_f32 v{Q + i}, v{X + i}, {t0}')
    a(f'v_mul_f32 {t2}, v{Q}, v{Q}')
    for i in range(1, 12): a(f'v_fmac_f32 {t2}, v{Q + i}, v{Q + i}')
    a(f'v_cndmask_b32 {t2}, 0, {t2}, {live}')
    wsum(a, t2, t1)
    a(f'v_mul_f32 {t2}, {fbits(1 / 576):#x}, {t2}')
    rnd1(a, t0); rnd1(a, t2)
    a(f'v_add_f32 {t2}, {fbits(1e-5):#x}, {t2}')
    rnd1(a, t2)
    a(f'v_sqrt_f32 {t2}, {t2}')
    rnd1(a, t2)
    a(f'v_rcp_f32 {t2}, {t2}')
    for i in range(12): a(f'v_sub_f32 v{Q + i}, v{X + i}, {t0}')
    rnd(a, list(range(Q, Q + 12)), PKR)
    for i in range(12): a(f'v_mul_f32 v{Q + i}, v{Q + i}, {t2}')
    rnd(a, list(range(Q, Q + 12)), PKR)

def unpack(a, dst, src, n):
    for i in range(n):
        a(f'v_lshlrev_b32 v{dst + 2 * i}, 16, v{src + i}\nv_and_b32 v{dst + 2 * i + 1}, 0xffff0000, v{src + i}')

def a_layer(a, X, YP, live, store_x, store_h):
    Q, PKR, T, YF = X + 12, X + 24, X + 30, X + 34
    layernorm(a, X, Q, PKR, T, live)
    unpack(a, YF, YP, 6)
    for i in range(12): a(f'v_mul_f32 v{Q + i}, v{Q + i}, v{YF + i}')
    rnd(a, list(range(Q, Q + 12)), PKR)
    for i in range(12): a(f'v_add_f32 v{X + i}, v{X + i}, v{Q + i}')
    rnd(a, list(range(X, X + 12)), YF)
    store_x(YF)
    layernorm(a, X, Q, PKR, T, live)
    store_h(PKR)

def lane48(a, v16, v8):
    a(f'''s_mov_b32 s24, -1
    s_mov_b32 s25, 0xffff
    v_lshlrev_b32 {v16}, 4, v0
    v_lshlrev_b32 {v8}, 3, v0
    v_mov_b32 v0, 0x80000000
    v_cndmask_b32 {v16}, v0, {v16}, s[24:25]
    v_cndmask_b32 {v8}, v0, {v8}, s[24:25]''')

def gen_red(a):
    v16, v8 = 'v1', 'v2'
    sL, sROW, sTMP = 's11', 's12', 's14'
    sS, sPP, sFP, sRO, sT2, sFH, sT3 = ['s%d' % i for i in range(52, 59)]
    a('red:')
    a(f'''s_sub_u32 {sL}, {sX}, 6
    s_sub_u32 {sROW}, {sT}, 24
    s_lshl_b32 {sROW}, {sROW}, 2
    s_add_u32 {sROW}, {sROW}, {sW}
    s_mov_b32 {sS}, 0
    s_mul_i32 {sPP}, {sL}, {64 * L.PP_J:#x}
    s_mul_i32 {sTMP}, {sROW}, 768
    s_add_u32 {sPP}, {sPP}, {sTMP}
    s_add_u32 {sPP}, {sPP}, {L.PP:#x}
    s_lshl_b32 {sFP}, {sL}, 9
    s_add_u32 {sFP}, {sFP}, {L.FP:#x}
    s_mul_i32 {sRO}, {sROW}, 1152
    s_lshl_b32 {sFH}, {sROW}, 2
    s_add_u32 {sFH}, {sFH}, {L.FH:#x}''')
    lane48(a, v16, v8)
    LOOP, L2, NX = a.lab('rl'), a.lab('r2'), a.lab('rn')
    a(f'{LOOP}:')
    a(f's_add_u32 {sS}, {sS}, 1')
    lp, dn = a.lab('rp'), a.lab('rd')
    a(f'{lp}:')
    a(f'''buffer_load_dwordx2 v[4:5], {v8}, {WS}, {sFP} offen sc1
    v_min_u32 v4, v4, v5
    v_cmp_gt_u32 vcc, {sS}, v4
    s_and_b64 vcc, vcc, s[24:25]
    s_cbranch_vccz {dn}
    s_sub_u32 {sBUD}, {sBUD}, 1
    s_cbranch_scc0 {lp}
    s_mov_b32 {sBUD}, 0''')
    a(f'{dn}:')
    PB = 100
    for kg in range(8):
        for cg in range(3):
            a(f's_add_u32 {sTMP}, {sPP}, {(kg * 3 + cg) * 32 * 768}')
            a(f'buffer_load_dwordx4 {vr(PB + 12 * kg + 4 * cg, 4)}, {v16}, {WS}, {sTMP} offen sc1')
    a(f's_mul_i32 {sTMP}, {sL}, {L.X2 - L.X1:#x}\ns_add_u32 {sTMP}, {sTMP}, {L.X1:#x}\ns_add_u32 {sTMP}, {sTMP}, {sRO}\ns_add_u32 {sT2}, {sRO}, {L.Y:#x}')
    for i in range(3): a(f'buffer_load_dwordx2 {vr(4 + 2 * i, 2)}, {v8}, {WS}, {sTMP} offen offset:{384 * i} sc1')
    for i in range(3): a(f'buffer_load_dwordx2 {vr(10 + 2 * i, 2)}, {v8}, {WS}, {sT2} offen offset:{384 * i}')
    for kg in range(1, 8):
        for i in range(12): a(f'v_add_f32 v{PB + i}, v{PB + i}, v{PB + 12 * kg + i}')
    rnd(a, list(range(PB, PB + 12)), PB + 12)
    X = 20
    unpack(a, X, 4, 6)
    for i in range(12): a(f'v_add_f32 v{X + i}, v{X + i}, v{PB + i}')
    rnd(a, list(range(X, X + 12)), 4)
    a(f's_cmp_eq_u32 {sL}, 1\ns_cbranch_scc1 {L2}')
    def st(base):
        def f(r):
            a(f's_add_u32 {sTMP}, {sRO}, {base:#x}')
            for i in range(3): a(f'buffer_store_dwordx2 {vr(r + 2 * i, 2)}, {v8}, {WS}, {sTMP} offen offset:{384 * i} sc1')
        return f
    a_layer(a, X, 10, 's[24:25]', st(L.X2), st(L.H2))
    a(f'v_mov_b32 v4, {sS}\nv_mov_b32 v5, 0\ns_waitcnt vmcnt(0)\ns_mov_b64 exec, 1\nbuffer_store_dword v4, v5, {WS}, {sFH} offen sc1\ns_mov_b64 exec, -1')
    a(f's_branch {NX}')
    a(f'{L2}:')
    for i in range(3): a(f'buffer_store_dwordx2 {vr(4 + 2 * i, 2)}, {v8}, {OUT}, {sRO} offen offset:{384 * i}')
    a(f'{NX}:')
    a(f's_add_u32 {sPP}, {sPP}, {L.PP_J:#x}\ns_add_u32 {sRO}, {sRO}, 36864')
    a(f's_cmp_lt_u32 {sS}, 64\ns_cbranch_scc1 {LOOP}')
    a('s_endpgm')

def gen_mega(a):
    a('.p2align 8\nmega_kernel:')
    a('s_cmp_ge_u32 s2, 256\ns_cbranch_scc1 .mega_end')
    a('s_load_dwordx16 s[16:31], s[0:1], 64')
    a(f'v_lshrrev_b32 v1, 6, v0\nv_and_b32 v0, 63, v0\nv_readfirstlane_b32 {sW}, v1')
    a(f's_getreg_b32 {sX}, hwreg(HW_REG_XCC_ID)\ns_and_b32 {sX}, {sX}, 7\ns_mov_b32 {sBUD}, 200000')
    a('s_waitcnt lgkmcnt(0)')
    srd(a, 4, 30, L.WS_BYTES)
    for d, b in ((32, 16), (36, 18), (40, 20), (44, 22)): srd(a, d, b, 4718592)
    srd(a, 48, 26, 2359296)
    a(f'v_mov_b32 v4, 0\ns_cmp_lg_u32 {sW}, 0\ns_cbranch_scc1 .tk')
    a(f's_lshl_b32 s11, {sX}, 5\nv_mov_b32 v1, s11\nv_mov_b32 v2, 1\ns_mov_b64 exec, 1')
    a('global_atomic_add v3, v1, v2, s[28:29] sc0 sc1\nds_write_b32 v4, v3\ns_mov_b64 exec, -1')
    a('.tk:\ns_waitcnt lgkmcnt(0)\ns_barrier\nds_read_b32 v3, v4')
    a(f'v_readfirstlane_b32 {sT}, v3\ns_barrier')
    a(f's_cmp_ge_u32 {sT}, 32\ns_cbranch_scc1 .mega_end')
    e = '.mega_end'
    a(f's_cmp_lt_u32 {sX}, 2\ns_cbranch_scc1 {"chain" if "c" in ROLES else e}')
    a(f's_cmp_lt_u32 {sX}, 6\ns_cbranch_scc1 {"qkv" if "q" in ROLES else e}')
    a(f's_cmp_lt_u32 {sT}, 24\ns_cbranch_scc1 {"op" if "o" in ROLES else e}')
    a(f's_branch {"red" if "r" in ROLES else e}')
    a('.mega_end:\ns_endpgm')
    if 'c' in ROLES: gen_chain(a)
    if 'q' in ROLES: gen_qkv(a)
    if 'o' in ROLES: gen_op(a)
    if 'r' in ROLES: gen_red(a)

MF3232 = 'v_mfma_f32_32x32x16_bf16'
CONV_LDS = 32768 + 4 * 17408
def gen_conv(a):
    KVR = 0; HC = 32768; EX = HC
    a('.p2align 8\nconv_kernel:')
    a('s_cmp_ge_u32 s2, 164\ns_cbranch_scc1 .conv_end')
    a('s_load_dwordx8 s[16:23], s[0:1], 8\ns_load_dwordx2 s[24:25], s[0:1], 40\ns_load_dwordx2 s[30:31], s[0:1], 120')
    a(f'v_lshrrev_b32 v1, 6, v0\nv_readfirstlane_b32 {sW}, v1')
    a('s_waitcnt lgkmcnt(0)')
    srd(a, 4, 30, L.WS_BYTES)
    a('s_cmp_lt_u32 s2, 144\ns_cbranch_scc1 .conv_go')
    a('s_sub_u32 s8, s2, 144\ns_cmp_eq_u32 s8, 0\ns_cselect_b32 s9, 0, -1\ns_lshl_b32 s8, s8, 16\nv_lshlrev_b32 v1, 4, v0')
    for r in range(4): a(f'v_mov_b32 v{4 + r}, s9')
    for i in range(16):
        a(f'buffer_store_dwordx4 v[4:7], v1, {WS}, s8 offen\ns_add_u32 s8, s8, 4096')
    a('.conv_end:\ns_endpgm\n.conv_go:')
    srd(a, 32, 16, 2359296)
    srd(a, 36, 18, 2359296)
    a(f's_lshl_b32 s8, s2, 2\ns_add_u32 s8, s8, {sW}\ns_lshl_b32 s9, s8, 12\ns_add_u32 s22, s22, s9\ns_addc_u32 s23, s23, 0')
    srd(a, 40, 22, 4096)
    a('s_lshl_b32 s9, s2, 5\ns_add_u32 s20, s20, s9\ns_addc_u32 s21, s21, 0\ns_load_dwordx8 s[52:59], s[20:21], 0')
    a('s_lshr_b32 s9, s8, 1\ns_lshl_b32 s9, s9, 2\ns_add_u32 s24, s24, s9\ns_addc_u32 s25, s25, 0\ns_load_dword s60, s[24:25], 0')
    a('v_mul_u32_u24 v2, 9216, v0\ns_lshl_b32 s9, s2, 3\nv_add_u32 v2, s9, v2\nv_subrev_u32 v1, 3456, v2\nv_add_u32 v3, 4608, v2')
    KB, VB = 10, 32
    for r in range(11):
        vo, im = ('v1', r * 1152) if r < 3 else (('v2', (r - 3) * 1152) if r < 7 else ('v3', (r - 7) * 1152))
        a(f'buffer_load_dwordx2 {vr(KB + 2 * r, 2)}, {vo}, s[32:35], 0 offen offset:{im}')
    for r in range(8):
        vo, im = ('v2', r * 1152) if r < 4 else ('v3', (r - 4) * 1152)
        a(f'buffer_load_dwordx2 {vr(VB + 2 * r, 2)}, {vo}, s[36:39], 0 offen offset:{im}')
    a(f'v_and_b32 v4, 63, v0\nv_lshlrev_b32 v5, 4, v4\ns_mul_i32 s11, {sW}, 17408\ns_add_u32 s11, s11, {HC}')
    th = a.tok('h')
    for i in range(17):
        c0 = (64 * i) // 260; thr = 260 * (c0 + 1) - 64 * i
        a(f'v_add_u32 v6, {(1024 * i - 62 - 4158 * c0) & 0xffffffff:#x}, v5')
        if thr < 64:
            a(f'v_subrev_u32 v7, 4158, v6\nv_cmp_le_u32 vcc, {thr}, v4\nv_cndmask_b32 v6, v6, v7, vcc')
        a(f's_add_u32 m0, s11, {i * 1024}')
        a('buffer_load_dwordx4 v6, s[40:43], 0 offen lds', tok=th)
    a('v_bfe_u32 v6, v4, 3, 2\nv_and_b32 v7, 7, v4\nv_add_u32 v8, v6, v7\nv_subrev_u32 v8, 7, v8\nv_lshlrev_b32 v8, 1, v8')
    a('buffer_load_ushort v9, v8, s[40:43], 0 offen')
    a('v_mul_u32_u24 v6, 4160, v6\nv_lshl_add_u32 v6, v7, 1, v6\nv_add_u32 v8, s11, v6')
    for r in range(4): a(f'v_mov_b32 v{48 + r}, 0')
    a(f's_lshl_b32 s12, {sW}, 13\nv_add_u32 v6, s12, v5')
    for i in range(3): a(f'ds_write_b128 v6, v[48:51] offset:{KVR + 5120 + 1024 * i}')
    a('s_waitcnt lgkmcnt(0)')
    for i in range(8): a(f's_lshl_b32 s{64 + 2 * i}, s{52 + i}, 16\ns_and_b32 s{65 + 2 * i}, s{52 + i}, 0xffff0000')
    a('s_lshl_b32 s61, s60, 16\ns_and_b32 s60, s60, 0xffff0000\ns_bitcmp1_b32 s8, 0\ns_cselect_b32 s60, s60, s61')
    a('v_sub_u32 v6, 255, v0\nv_lshrrev_b32 v7, 2, v6\nv_mul_u32_u24 v7, 80, v7\nv_and_b32 v6, 3, v6\nv_lshl_add_u32 v7, v6, 4, v7')
    KF, AC = 52, 64
    for ch in range(4):
        un = (lambda d, s: f'v_lshlrev_b32 v{d}, 16, v{s}') if ch % 2 == 0 else (lambda d, s: f'v_and_b32 v{d}, 0xffff0000, v{s}')
        for r in range(11): a(un(KF + r, KB + 2 * r + ch // 2))
        for r in range(8):
            a(f'v_mul_f32 v{AC + r}, s{64 + 4 * ch + 3}, v{KF + r}')
            for j in range(1, 4): a(f'v_fmac_f32 v{AC + r}, s{64 + 4 * ch + 3 - j}, v{KF + r + j}')
        for r in range(8):
            a(un(KF + r, VB + 2 * r + ch // 2))
            a(f'v_mul_f32 v{AC + r}, v{AC + r}, v{KF + r}')
        for i in range(4): a(f'v_cvt_pk_bf16_f32 v{72 + i}, v{AC + 7 - 2 * i}, v{AC + 6 - 2 * i}')
        a(f'ds_write_b128 v7, v[72:75] offset:{KVR + ch * 8192}')
    a.wait(th)
    a('ds_write_b16 v8, v9 offset:48')
    a('v_and_b32 v6, 3, v4\nv_mul_u32_u24 v1, 4160, v6\nv_bfe_u32 v6, v4, 2, 3\nv_lshl_add_u32 v1, v6, 3, v1\nv_lshrrev_b32 v7, 5, v4\nv_lshl_add_u32 v1, v7, 4, v1\nv_add_u32 v1, s11, v1')
    a('v_and_b32 v6, 31, v4\nv_sub_u32 v6, 31, v6\nv_mul_u32_u24 v3, 80, v6\nv_add_u32 v3, s12, v3\nv_lshl_add_u32 v2, v7, 4, v3')
    a('v_lshlrev_b32 v7, 3, v7\nv_sub_u32 v3, v3, v7')
    a('s_waitcnt lgkmcnt(0)\ns_barrier')
    D1, D0, AR_, BR = 16, 32, 48, 64
    NA, NB = 4, 6
    ops = []
    for u in range(128):
        ops.append((u, 1))
        if u < 64: ops.append((u, 0))
    areg = lambda u: AR_ + 4 * (u % NA)
    rdA = lambda u: [f'ds_read_b64 {vr(areg(u), 2)}, v1 offset:{u * 32}', f'ds_read_b64 {vr(areg(u) + 2, 2)}, v1 offset:{u * 32 + 8}']
    rdB = lambda i: [f'ds_read_b128 {vr(BR + 4 * (i % NB), 4)}, v2 offset:{KVR + (1 - ops[i][1]) * 2560 + 80 * (ops[i][0] >> 1) + 32 * (ops[i][0] & 1)}']
    main = []; fill = {-1: []}
    for u in range(NA): fill[-1] += rdA(u)
    for i in range(NB): fill[-1] += rdB(i)
    for i, (u, N) in enumerate(ops):
        d = vr(D1 if N else D0, 16)
        main.append(f'{MF3232} {d}, {vr(areg(u), 4)}, {vr(BR + 4 * (i % NB), 4)}, {"0" if u == 0 else d}')
        f = []
        if i + NB < len(ops): f += rdB(i + NB)
        if (i + 1 == len(ops) or ops[i + 1][0] != u) and u + NA < 128: f += rdA(u + NA)
        fill[i] = f
    weave(a, main, fill)
    for N in (0, 1):
        for rq in range(4): a(f'ds_read_b64 {vr(48 + 8 * N + 2 * rq, 2)}, v3 offset:{KVR + (1 - N) * 2560 + 56 - 16 * rq}')
    a('s_barrier')
    a(f'v_and_b32 v6, 31, v4\nv_mul_u32_u24 v6, 264, v6\nv_lshrrev_b32 v7, 5, v4\nv_lshl_add_u32 v6, v7, 5, v6\ns_lshl_b32 s9, {sW}, 1\nv_add_u32 v6, s9, v6')
    for N in (0, 1):
        D = D1 if N else D0
        for rq in range(4):
            s0, s1 = 48 + 8 * N + 2 * rq, 49 + 8 * N + 2 * rq
            a(f'v_and_b32 v64, 0xffff0000, v{s1}\nv_lshlrev_b32 v65, 16, v{s1}\nv_and_b32 v66, 0xffff0000, v{s0}\nv_lshlrev_b32 v67, 16, v{s0}')
            for r in range(4): a(f'v_fmac_f32 v{D + 4 * rq + r}, s60, v{64 + r}')
            a(f'v_cvt_pk_bf16_f32 v68, v{D + 4 * rq}, v{D + 4 * rq + 1}\nv_cvt_pk_bf16_f32 v69, v{D + 4 * rq + 2}, v{D + 4 * rq + 3}')
            o = EX + N * 32 * 264 + rq * 64
            a(f'ds_write_b16 v6, v68 offset:{o}\nds_write_b16_d16_hi v6, v68 offset:{o + 8}\nds_write_b16 v6, v69 offset:{o + 16}\nds_write_b16_d16_hi v6, v69 offset:{o + 24}')
    a('v_lshrrev_b32 v6, 5, v0\nv_mul_u32_u24 v6, 264, v6\nv_and_b32 v7, 31, v0\nv_lshl_add_u32 v6, v7, 3, v6\nv_mul_u32_u24 v7, 1152, v0')
    a(f's_lshl_b32 s9, s2, 3\ns_add_u32 s9, s9, {L.Y:#x}')
    a('s_waitcnt lgkmcnt(0)\ns_barrier')
    for j in range(8): a(f'ds_read_b64 {vr(16 + 2 * j, 2)}, v6 offset:{EX + j * 8 * 264}')
    for j in range(8):
        a(f'buffer_store_dwordx2 {vr(16 + 2 * j, 2)}, v7, {WS}, s9 offen\ns_add_u32 s9, s9, {256 * 1152}')
    a('s_endpgm')

def gen_ln1(a):
    a('.p2align 8\nln1_kernel:')
    a('s_cmp_ge_u32 s2, 513\ns_cbranch_scc1 .ln1_end')
    a('s_load_dwordx2 s[16:17], s[0:1], 0\ns_load_dwordx2 s[18:19], s[0:1], 56\ns_load_dwordx2 s[30:31], s[0:1], 120')
    a(f'v_lshrrev_b32 v1, 6, v0\nv_and_b32 v0, 63, v0\nv_readfirstlane_b32 {sW}, v1')
    a('s_waitcnt lgkmcnt(0)')
    srd(a, 4, 30, L.WS_BYTES)
    srd(a, 32, 16, 2359296)
    srd(a, 36, 18, 9216)
    a('s_cmp_lt_u32 s2, 512\ns_cbranch_scc1 .ln1_go')
    bits(a, 'v1', 'v3', [(4, 2, 0)])
    a(f'v_mul_u32_u24 v1, 2304, v1\nv_and_b32 v3, 15, v0\nv_lshl_add_u32 v1, v3, 1, v1\ns_mul_i32 s8, {sW}, 288')
    bits(a, 'v2', 'v3', [(3, 1, 10), (1, 2, 8), (4, 2, 6), (0, 1, 4)])
    bits(a, 'v4', 'v3', [(4, 2, 6), (0, 4, 1)])
    a(f's_lshl_b32 s9, {sW}, 11\ns_add_u32 s9, s9, {L.MR:#x}\ns_add_u32 s10, s9, {L.MR_L:#x}')
    a(f's_lshl_b32 s11, {sW}, 8\ns_add_u32 s11, s11, {L.MR + 8192:#x}\ns_add_u32 s12, s11, {L.MR_L:#x}')
    for T in range(9):
        for b in range(2): a(f'buffer_load_ushort v{10 + 2 * T + b}, v1, s[36:39], s8 offen offset:{b * 1152 + T * 32}')
    for T in range(9):
        for b in range(2):
            for l in range(2):
                if T < 8: a(f'buffer_store_short v{10 + 2 * T + b}, v2, {WS}, s{9 + l} offen offset:{b * 32 + T * 2}')
                else: a(f'buffer_store_short v{10 + 2 * T + b}, v4, {WS}, s{11 + l} offen offset:{b * 32}')
    a('.ln1_end:\ns_endpgm\n.ln1_go:')
    lane48(a, 'v1', 'v2')
    a(f's_lshl_b32 s8, s2, 2\ns_add_u32 s8, s8, {sW}\ns_mul_i32 s8, s8, 1152\ns_add_u32 s9, s8, {L.Y:#x}')
    for i in range(3): a(f'buffer_load_dwordx2 {vr(4 + 2 * i, 2)}, v2, s[32:35], s8 offen offset:{384 * i}')
    for i in range(3): a(f'buffer_load_dwordx2 {vr(10 + 2 * i, 2)}, v2, {WS}, s9 offen offset:{384 * i}')
    unpack(a, 20, 4, 6)
    def st(base):
        def f(r):
            a(f's_add_u32 s9, s8, {base:#x}')
            for i in range(3): a(f'buffer_store_dwordx2 {vr(r + 2 * i, 2)}, v2, {WS}, s9 offen offset:{384 * i}')
        return f
    a_layer(a, 20, 10, 's[24:25]', st(L.X1), st(L.H1))
    a('s_endpgm')

def kd(name, vg, acc):
    return f'''.amdhsa_kernel {name}
  .amdhsa_next_free_vgpr {vg}
  .amdhsa_next_free_sgpr 96
  .amdhsa_accum_offset {acc}
  .amdhsa_group_segment_fixed_size 0
  .amdhsa_kernarg_size 128
  .amdhsa_user_sgpr_count 2
  .amdhsa_user_sgpr_kernarg_segment_ptr 1
  .amdhsa_system_sgpr_workgroup_id_x 1
  .amdhsa_float_denorm_mode_32 3
.end_amdhsa_kernel
'''

def build(launches=('conv', 'ln1', 'mega')):
    a = Asm()
    gen_conv(a); gen_ln1(a); gen_mega(a)
    body = a.finish(['conv_kernel', 'ln1_kernel', 'mega_kernel'])
    ref = open(f'cdna_kernels/{NAME}.s.ref').read().split('\n')
    hdr = [l for l in ref if l.startswith(';') and 'aunch' not in l and 'grid=' not in l]
    LD = {'conv': f'; @launch kernel=conv_kernel grid=(164,1,1) block=(256,1,1) lds={CONV_LDS}',
          'ln1': '; @launch kernel=ln1_kernel grid=(513,1,1) block=(256,1,1) lds=0',
          'mega': '; @launch kernel=mega_kernel grid=(256,1,1) block=(256,1,1) lds=163840'}
    out = '\n'.join(hdr + [LD[x] for x in launches]) + '\n.amdgcn_target "amdgcn-amd-amdhsa--gfx950"\n.text\n'
    for k in ('conv_kernel', 'ln1_kernel', 'mega_kernel'): out += f'.globl {k}\n.type {k},@function\n'
    out += body
    out += '.section .rodata,"a"\n'
    for k, vg, acc in (('conv_kernel', 96, 96), ('ln1_kernel', 72, 72), ('mega_kernel', 512, 256)):
        out += '.p2align 6\n' + kd(k, vg, acc)
    return out

if __name__ == '__main__':
    import argparse
    ap = argparse.ArgumentParser()
    ap.add_argument('-o', default=f'cdna_kernels/{NAME}.s')
    ap.add_argument('--debug', action='store_true')
    ap.add_argument('--roles', default='cqor')
    ap.add_argument('--launches', default='conv,ln1,mega')
    ap.add_argument('--steps', type=int, default=64)
    ar = ap.parse_args()
    NSTEPS = ar.steps
    DEBUG = ar.debug; ROLES = ar.roles
    open(ar.o, 'w').write(build(ar.launches.split(',')))
```

```python
import re

REG_RE = re.compile(r'\b([vas])(\d+)\b|\b([vas])\[(\d+):(\d+)\]|\b(vcc|exec|m0)\b')

def regs_of(op):
    out = []
    for m in REG_RE.finditer(op):
        if m.group(1):
            out.append(m.group(1) + m.group(2))
        elif m.group(3):
            out += [m.group(3) + str(i) for i in range(int(m.group(4)), int(m.group(5)) + 1)]
        else:
            out.append(m.group(6))
    return out

TRANS = ('v_exp_f32', 'v_log_f32', 'v_rcp_f32', 'v_rsq_f32', 'v_sqrt_f32', 'v_sin_f32', 'v_cos_f32')

class Ins:
    def __init__(self, text, tok_def=None, tok_use=None):
        self.text = text
        self.tok_def = tok_def
        self.tok_use = tok_use or []
        self.label = None
        self.kind = 'other'
        self.defs, self.uses = [], []
        self.srcC, self.srcAB = [], []
        self.passes = 0
        self.cnt = None
        self.wide_store = []
        self.dpp = False
        self.pseudo = False
        t = text.split(';')[0].strip()
        if t.endswith(':'):
            self.label = t[:-1]; self.kind = 'label'; return
        if t == '' or t.startswith('.'):
            self.kind = 'dir'; self.pseudo = True; return
        sp = t.split(None, 1)
        mn = sp[0]; self.mn = mn
        rest = sp[1] if len(sp) > 1 else ''
        ops = [o.strip() for o in re.split(r',(?![^\[]*\])', rest)] if rest else []
        self.ops = ops
        R = [regs_of(o) for o in ops]
        allr = lambda lst: [r for x in lst for r in x]
        if mn.startswith('v_mfma') or mn.startswith('v_smfmac'):
            self.kind = 'mfma'
            self.passes = 8 if '32x32' in mn else 4
            self.defs = R[0]
            if mn.startswith('v_smfmac'):
                self.srcAB = R[1] + R[2] + R[3]; self.srcC = R[0]
            else:
                self.srcAB = R[1] + R[2]; self.srcC = R[3]
            self.uses = self.srcAB + self.srcC
        elif mn.startswith('v_'):
            self.kind = 'valu'
            self.dpp = ('_dpp' in mn) or any(k in rest for k in ('row_', 'quad_perm', 'wave_'))
            if mn.startswith('v_permlane') and 'swap' in mn:
                self.defs = R[0] + R[1]; self.uses = R[0] + R[1]
            elif mn.startswith('v_cmp'):
                self.defs = R[0]; self.uses = allr(R[1:])
            elif mn.startswith(('v_add_co', 'v_sub_co', 'v_addc_co', 'v_subb_co', 'v_subrev_co', 'v_mad_u64')):
                self.defs = R[0] + R[1]; self.uses = allr(R[2:])
            elif mn == 'v_nop':
                pass
            else:
                self.defs = R[0]; self.uses = allr(R[1:]); self.srcs = list(self.uses)
                if mn.startswith(('v_fmac', 'v_dot2c', 'v_writelane', 'v_pk_fmac')) or self.dpp:
                    self.uses = self.uses + R[0]
        elif mn.startswith('ds_'):
            self.kind = 'ds'; self.cnt = 'lgkm'
            if mn.startswith(('ds_read', 'ds_bpermute', 'ds_permute', 'ds_swizzle')):
                self.defs = R[0]; self.uses = allr(R[1:])
                if 'd16' in mn: self.uses = self.uses + R[0]
            else:
                self.uses = allr(R)
        elif mn.startswith(('buffer_', 'global_')):
            self.kind = 'vmem'; self.cnt = 'vm'
            if mn in ('buffer_wbl2', 'buffer_inv'):
                pass
            elif re.search(r'\blds\b', rest) or '_lds_' in mn:
                self.uses = allr(R) + ['m0']
                self.ldsdma = True
            elif '_load' in mn:
                self.defs = R[0]; self.uses = allr(R[1:])
                if 'd16' in mn: self.uses = self.uses + R[0]
            elif '_atomic' in mn:
                if re.search(r'\bsc0\b', rest):
                    self.defs = R[0]
                    self.uses = allr(R) if mn.startswith('buffer_') else allr(R[1:])
                else:
                    self.uses = allr(R)
            else:
                self.uses = allr(R)
                if 'x3' in mn or 'x4' in mn:
                    self.wide_store = R[0] if mn.startswith('buffer_') else R[1]
        elif mn.startswith(('s_load', 's_memtime', 's_memrealtime', 's_buffer_load', 's_atomic')):
            self.kind = 'smem'; self.cnt = 'smem'
            self.defs = R[0]; self.uses = allr(R[1:])
        elif mn.startswith('s_'):
            self.kind = 'salu'
            if mn in ('s_waitcnt', 's_nop', 's_barrier', 's_sleep', 's_endpgm', 's_setprio', 's_branch') or mn.startswith(('s_cbranch', 's_cmp', 's_bitcmp')):
                self.uses = allr(R) if mn.startswith(('s_cmp', 's_bitcmp')) else []
                if 'vcc' in mn: self.uses = ['vcc']
                if 'exec' in mn: self.uses = ['exec']
            else:
                self.defs = R[0]; self.uses = allr(R[1:])
                if 'saveexec' in mn: self.defs = self.defs + ['exec']
        else:
            raise ValueError('unknown instr: ' + text)

    def states(self):
        if self.kind in ('label', 'dir') or self.pseudo: return 0
        if self.mn == 's_nop': return int(self.ops[0], 0) + 1
        return 1

class Asm:
    def __init__(self):
        self.ins = []
        self.ntok = 0
        self.nlab = 0
    def __call__(self, text, tok=None):
        for line in text.split('\n'):
            line = line.strip()
            if line:
                self.ins.append(Ins(line, tok_def=tok))
    def tok(self, name='t'):
        self.ntok += 1
        return '#%s%d' % (name, self.ntok)
    def wait(self, *toks):
        i = Ins('; wait ' + ' '.join(toks), tok_use=list(toks))
        self.ins.append(i)
    def need(self, *ops):
        r = [x for o in ops for x in regs_of(o)]
        self.ins.append(Ins('; need', tok_use=r))
    def lab(self, name='L'):
        self.nlab += 1
        return '.%s_%d' % (name, self.nlab)

    def _succ(self):
        ins = self.ins
        labs = {x.label: i for i, x in enumerate(ins) if x.label}
        succ = []
        for i, x in enumerate(ins):
            s = []
            mn = getattr(x, 'mn', '')
            if mn == 's_endpgm':
                pass
            elif mn == 's_branch':
                s = [labs[x.ops[0]]]
            elif mn.startswith('s_cbranch'):
                s = [labs[x.ops[0]]] + ([i + 1] if i + 1 < len(ins) else [])
            elif i + 1 < len(ins):
                s = [i + 1]
            succ.append(s)
        return succ

    def insert_waits(self, entries):
        ins = self.ins
        succ = self._succ()
        labs = {x.label: i for i, x in enumerate(ins) if x.label}
        MAX = {'vm': 63, 'lgkm': 15}
        def need(x, st):
            w = {}
            for r in list(x.uses) + list(x.defs) + list(x.tok_use):
                if r in st:
                    c, n = st[r]
                    if (c == 'lgkm' or c == 'vm') and r in x.defs and r not in x.uses and x.cnt == c:
                        continue
                    if c == 'smem': c, n = 'lgkm', 0
                    w[c] = min(w.get(c, 99), n)
            return w
        def applyw(st, w):
            out = {}
            for r, (c, n) in st.items():
                if c == 'smem':
                    if w.get('lgkm', 99) == 0: continue
                elif c in w and n >= w[c]:
                    continue
                out[r] = (c, n)
            return out
        def transfer(x, st):
            w = need(x, st)
            if w: st = applyw(st, w)
            if getattr(x, 'mn', '') == 's_waitcnt':
                ww = {}
                m = re.search(r'vmcnt\((\d+)\)', x.text)
                if m: ww['vm'] = int(m.group(1))
                m = re.search(r'lgkmcnt\((\d+)\)', x.text)
                if m: ww['lgkm'] = int(m.group(1))
                st = applyw(st, ww)
            if x.cnt:
                c = x.cnt
                ns = {}
                for r, (cc, n) in st.items():
                    if cc == c and c != 'smem':
                        n += 1
                        if n > MAX[c]: continue
                    ns[r] = (cc, n)
                for r in x.defs: ns[r] = (c, 0)
                if x.tok_def: ns[x.tok_def] = (c, 0)
                if c == 'smem' and not x.defs: ns['#smem'] = (c, 0)
                st = ns
            return w, st
        def merge(a, b):
            o = dict(a); ch = False
            for r, (c, n) in b.items():
                if r not in o: o[r] = (c, n); ch = True
                elif o[r][0] != c:
                    raise ValueError('reg %s pending on two counters' % r)
                elif n < o[r][1]: o[r] = (c, n); ch = True
            return o, ch
        inst = [None] * len(ins)
        work = []
        for e in entries:
            inst[labs[e]] = {}; work.append(labs[e])
        while work:
            i = work.pop()
            _, st = transfer(ins[i], inst[i])
            for s in succ[i]:
                if inst[s] is None:
                    inst[s] = st; work.append(s)
                else:
                    o, ch = merge(inst[s], st)
                    if ch: inst[s] = o; work.append(s)
        out = []
        for i, x in enumerate(ins):
            if inst[i] is not None:
                w, _ = transfer(x, inst[i])
                if w:
                    t = 's_waitcnt'
                    if 'vm' in w: t += ' vmcnt(%d)' % w['vm']
                    if 'lgkm' in w: t += ' lgkmcnt(%d)' % w['lgkm']
                    out.append(Ins(t))
            out.append(x)
        self.ins = out

    @staticmethod
    def _req(p, c):
        r = 0
        pd = set(p.defs)
        if p.kind == 'valu':
            pv = {x for x in pd if x[0] in 'va' and x != 'vcc'}
            ps = pd - pv
            if c.kind == 'mfma' and pv & set(c.uses): r = max(r, 2)
            if c.kind == 'valu':
                if pv & set(c.uses):
                    if c.dpp and pv & set(c.srcs): r = max(r, 2)
                    if c.mn.startswith('v_permlane'): r = max(r, 2)
                    if c.mn.startswith(('v_readlane', 'v_readfirstlane')): r = max(r, 1)
                    if p.mn.startswith(TRANS): r = max(r, 1)
                    if 'op_sel' in p.text or 'sdwa' in p.text: r = max(r, 1)
                if ps & set(c.uses):
                    r = max(r, 4 if c.mn.startswith(('v_readlane', 'v_writelane')) else 2)
                if 'vcc' in ps and c.mn.startswith('v_div_fmas'): r = max(r, 4)
            if c.kind == 'vmem' and ps & set(c.uses): r = max(r, 5)
            if c.kind in ('vmem', 'ds') and p.mn.startswith(TRANS) and pv & set(c.uses): r = max(r, 1)
        if p.kind == 'mfma':
            big = 8 if p.passes == 4 else 12
            if c.kind == 'mfma':
                if pd & set(c.srcAB): r = max(r, big)
                if pd & set(c.srcC):
                    if not (list(c.srcC) == list(p.defs) and c.mn == p.mn):
                        r = max(r, big - 2)
                elif pd & set(c.defs):
                    r = max(r, big)
            elif c.kind in ('valu', 'vmem', 'ds'):
                if pd & (set(c.uses) | set(c.defs)): r = max(r, big)
                if c.kind == 'valu' and set(p.srcC) & set(c.defs): r = max(r, 3 if p.passes == 4 else 7)
        if p.kind == 'salu' and 'm0' in pd and 'm0' in c.uses and c.kind in ('vmem', 'ds'): r = max(r, 1)
        if p.wide_store and set(p.wide_store) & set(c.defs): r = max(r, 2)
        return r

    def insert_nops(self):
        ins = self.ins
        succ = self._succ()
        pred = [[] for _ in ins]
        for i, s in enumerate(succ):
            for j in s: pred[j].append(i)
        extra = [0] * len(ins)
        W = 12
        for i, c in enumerate(ins):
            if c.kind in ('label', 'dir') or c.pseudo or c.kind in ('salu', 'smem'): continue
            need = 0
            stack = [(j, 0) for j in pred[i]]
            seen = {}
            while stack:
                j, d = stack.pop()
                if d >= W: continue
                if j in seen and seen[j] <= d: continue
                seen[j] = d
                p = ins[j]
                if p.kind not in ('label', 'dir') and not p.pseudo:
                    q = self._req(p, c)
                    if q - d > need: need = q - d
                d2 = d + p.states() + (extra[j] if j < i else 0)
                for k in pred[j]: stack.append((k, d2))
            extra[i] = need
        out = []
        for i, x in enumerate(ins):
            if extra[i] > 0:
                out.append(Ins('s_nop %d' % (extra[i] - 1)))
            out.append(x)
        self.ins = out

    def finish(self, entries):
        self.insert_waits(entries)
        self.insert_nops()
        lines = []
        for x in self.ins:
            if x.label or x.kind == 'dir' and not x.text.startswith(';'): lines.append(x.text)
            elif x.pseudo: continue
            else: lines.append('  ' + x.text)
        return '\n'.join(lines) + '\n'

def vr(b, n=1, p='v'):
    return '%s%d' % (p, b) if n == 1 else '%s[%d:%d]' % (p, b, b + n - 1)
```

```python
FKV = 0x0000
FO  = 0x4000
FM  = 0x8000
FP  = 0xA000
FH  = 0xA800
FLAG_BYTES = 0xB000
MR  = 0x20000
SLOT = 33 * 9216
MR_L = 0xE0000
RING_END = 0x1E0000
DBG = 0x1000000
DBG2 = 0x1800000
ROWS = 0x280000
Y   = 0x200000
X1  = Y + ROWS
H1  = X1 + ROWS
X2  = H1 + ROWS
H2  = X2 + ROWS
KVM = 0xD000000
KVM_V = 2048
O   = 0x2000000
KV  = 0x4000000
PP  = 0x8000000
PP_C = 32 * 24576
WS_BYTES = 268435456

def pi_col(kap, k):
    g, x = k >> 4, k & 15
    p, eta, b = x >> 2, (x >> 1) & 1, x & 1
    j = 2 * p + b
    if kap < 8:
        return 144 * (kap >> 1) + 16 * (4 * (kap & 1) + (j & 3)) + 4 * g + 2 * eta + (j >> 2)
    return 144 * g + 128 + 8 * eta + j
```

```python
import sys, math, struct
from asmlib import Asm, vr
import layout as L

NAME = 'interleave_layers__ssm_conv_h3__memory_aug_recurrent_mem_tr__prompt'
DEBUG = False
NSTEPS = 64
TIMELINE = False
SPOS = None
FIXKV = False
LIGHT = False
PROF = []
OPT = {}
ROLES = 'cqor'

def fbits(x): return struct.unpack('<I', struct.pack('<f', x))[0]
CSC = fbits(128 ** -0.5 * math.log2(math.e))
SMF = 'v_smfmac_f32_16x16x64_bf16'
MF32 = 'v_mfma_f32_16x16x32_bf16'
MF16 = 'v_mfma_f32_16x16x16_bf16'
DPPF = 'row_mask:0xf bank_mask:0xf'

sW, sX, sT, sBUD = 's3', 's8', 's9', 's10'
WS, WQ, WK, WV, WO, OUT = 's[4:7]', 's[32:35]', 's[36:39]', 's[40:43]', 's[44:47]', 's[48:51]'

def srd(a, d, b, nbytes):
    a(f's_mov_b32 s{d}, s{b}\ns_mov_b32 s{d+1}, s{b+1}\ns_mov_b32 s{d+2}, {nbytes:#x}\ns_mov_b32 s{d+3}, 0x20000')

def weave(a, main, fill):
    def em(x):
        if callable(x): x()
        else: a(x)
    for x in fill.get(-1, []): em(x)
    for i, m in enumerate(main):
        em(m)
        for x in fill.get(i, []): em(x)
    for k in fill: assert k < len(main), k

def poll_flag(a, vdst, voff, soff, need, sleep=0, imm=0):
    lp, dn = a.lab('pl'), a.lab('pd')
    a(f'{lp}:')
    a(f'buffer_load_dword {vdst}, {voff}, {WS}, {soff} offen offset:{imm} sc1')
    a(f'v_cmp_gt_u32 vcc, {need}, {vdst}')
    a(f's_cbranch_vccz {dn}')
    if sleep: a(f's_sleep {sleep}')
    a(f's_sub_u32 {sBUD}, {sBUD}, 1\ns_cbranch_scc0 {lp}\ns_mov_b32 {sBUD}, 0')
    a(f'{dn}:')

def load_units(a, units, vTR, vLW, sLB, sTMP, tmp, NS=9, vPR=None):
    toks = {}
    def issue(u):
        s_, vo, sb, imm = units[u][:4]
        t = a.tok('u')
        for q in range(4):
            a(f's_add_u32 m0, {sLB}, {(u % NS) * 4096 + q * 1024}')
            a(f's_add_u32 {sTMP}, {sb}, {imm[q]:#x}')
            a(f'buffer_load_dwordx4 {vo}, {s_}, {sTMP} offen lds', tok=t)
        toks[u] = t
    for u in range(min(NS, len(units))): issue(u)
    for u in range(len(units)):
        a.wait(toks[u])
        d0, d1 = units[u][4], units[u][5]
        perm = len(units[u]) > 6 and units[u][6]
        inplace = d0 == 'lds'
        if inplace: d0, d1 = ('v', tmp + 16), ('v', tmp + 24)
        t0, t1 = (('v', tmp), ('v', tmp + 8)) if perm else (d0, d1)
        so = (u % NS) * 4096
        def wb(r):
            a('s_waitcnt lgkmcnt(0)')
            for i in range(4): a(f'ds_write_b128 {vLW}, {vr(r + 4 * i, 4)} offset:{so + i * 1024}')
        for T, d in enumerate((t0, t1)):
            if d is None: continue
            for rp in range(4):
                a(f'ds_read_b64_tr_b16 {vr(d[1] + 2 * rp, 2, d[0])}, {vTR} offset:{so + T * 32 + (rp & 1) * 256 + (rp >> 1) * 2048}')
        if perm:
            wb(tmp)
            for T, d in enumerate((d0, d1)):
                for hh in range(2):
                    a(f'ds_read_b128 {vr(d[1] + 4 * hh, 4, d[0])}, {vPR} offset:{so + T * 16 + hh * 1024}')
        if inplace: wb(tmp + 16)
        if u + NS < len(units):
            a('s_waitcnt lgkmcnt(0)')
            issue(u + NS)
    a('s_waitcnt lgkmcnt(0)')

def mk_vTR(a, dst, t0, sLB):
    a(f'''v_lshrrev_b32 {dst}, 4, v0
    v_lshlrev_b32 {dst}, 9, {dst}
    v_bfe_u32 {t0}, v0, 2, 2
    v_lshl_add_u32 {dst}, {t0}, 6, {dst}
    v_and_b32 {t0}, 3, v0
    v_lshl_add_u32 {dst}, {t0}, 3, {dst}
    v_add_u32 {dst}, {sLB}, {dst}''')

def bits(a, dst, tmp, fields, const=None):
    first = True
    for lo, wd, sh in fields:
        if first:
            a(f'v_bfe_u32 {dst}, v0, {lo}, {wd}')
            if sh: a(f'v_lshlrev_b32 {dst}, {sh}, {dst}')
            first = False
        else:
            a(f'v_bfe_u32 {tmp}, v0, {lo}, {wd}')
            a(f'v_lshl_add_u32 {dst}, {tmp}, {sh}, {dst}')
    if const is not None: a(f'v_add_u32 {dst}, {const}, {dst}')

def xreduce(a, op, x, t):
    for sw in ('v_permlane16_swap_b32', 'v_permlane32_swap_b32'):
        a(f'v_mov_b32 {t}, {x}\n{sw} {t}, {x}\n{op} {x}, {x}, {t}')

def stamp(a, idx, force=False):
    if PROF and idx in (1, 3, 4, 5) and not force: return
    if DEBUG: a(f's_memtime s[{64 + 2 * idx}:{65 + 2 * idx}]')

def rts(a, vt, idx_sgpr, add):
    if not TIMELINE: return
    sk = a.lab('ts')
    a(f's_cmp_lg_u32 {sW}, 0\ns_cbranch_scc1 {sk}')
    a('s_memrealtime s[100:101]\ns_waitcnt lgkmcnt(0)')
    a(f'v_mov_b32 v{vt}, s100\ns_lshl_b32 s100, {sX}, 5\ns_add_u32 s100, s100, {sT}\ns_lshl_b32 s100, s100, 8')
    if idx_sgpr: a(f's_lshl_b32 s101, {idx_sgpr}, 1\ns_add_u32 s100, s100, s101')
    a(f's_add_u32 s100, s100, {add}\ns_lshl_b32 s100, s100, 2\ns_add_u32 s100, s100, {L.DBG2:#x}')
    a(f'v_mov_b32 v{vt + 1}, 0\ns_mov_b64 exec, 1\nbuffer_store_dword v{vt}, v{vt + 1}, {WS}, s100 offen\ns_mov_b64 exec, -1')
    a(f'{sk}:')

class Stream:
    def __init__(self, a):
        self.a = a; self.m = []; self.g = {}
    def mf(self, text): self.m.append(text); return len(self.m) - 1
    def add(self, pos, kind, *xs):
        self.g.setdefault((pos, kind), []).extend(xs)
    def emit(self):
        a = self.a
        def em(x):
            if callable(x): x()
            else: a(x)
        for (p, k) in self.g: assert -1 <= p < len(self.m), p
        for i in range(-1, len(self.m)):
            if i >= 0: a(self.m[i])
            if i >= 0 and i + 1 < len(self.m) and not self.g.get((i, 'X')):
                ops = self.m[i + 1].split(None, 1)[1]
                a.need(ops)
            for k in 'SDVX':
                for x in self.g.get((i, k), []): em(x)

def gen_chain(a):
    MEM = 147456; QX = MEM + 9216; KXM = QX + 2176; SX = KXM + 2112
    IDX, AR, LW, QR, QW, KR, OR, RW, L2, RR, TA, JK = ['v%d' % i for i in range(12)]
    SC = 12; KV = 16; AQ = 24; ACQ = 40; ACK = 48; Z = 56; X = 64; Yb = 72
    sL, sH, sLB, sTMP, sB0, sB1 = 's11', 's12', 's13', 's14', 's15', 's16'
    sS, sKV, sKO, sVO, sM0, sM1, sM2, sP0, sP1, sU, sKVM, sFM, sFK, sNEED, sSW, sOW, sMW, sPO, sT2 = ['s%d' % i for i in range(52, 64)] + ['s17', 's18', 's19', 's20', 's21', 's22', 's23']
    LO8, HFW, L32 = 's[24:25]', 's[26:27]', 's[28:29]'
    sC, sT3 = 's30', 's31'
    ODD = 's[80:81]'; SM = 82
    sR = ['s90', 's91', 's92', 's93']; sRM = 's94'; sMB = 's95'; sRA = sFM; sRB = 's44'; sTO = 's45'; sPF = 's47'; sPR = 's48'; sM4 = 's49'; sS1 = 's50'; sPV = 's51'; sP8 = 's43'; sUR = sPR
    a('chain:')
    a(f's_mov_b32 {sL}, {sX}\ns_mov_b32 {sH}, {sT}\ns_mul_i32 {sLB}, {sW}, 36864')
    vTR, vo1, vo2, vo3, vPR, t0 = 'v20', 'v21', 'v22', 'v23', 'v19', 'v24'
    mk_vTR(a, vTR, t0, sLB)
    bits(a, LW, t0, [(0, 6, 4)], sLB)
    bits(a, vPR, t0, [(1, 1, 11), (4, 2, 8), (2, 2, 6), (0, 1, 5)], sLB)
    bits(a, vo1, t0, [(0, 2, 4), (2, 1, 17), (3, 1, 16), (4, 2, 14)])
    bits(a, vo2, t0, [(0, 2, 4), (2, 1, 13), (4, 2, 15), (3, 1, 17), (3, 1, 20)])
    bits(a, vo3, t0, [(3, 1, 5), (5, 1, 4), (4, 1, 1), (2, 1, 0)])
    a(f'v_mul_u32_u24 {vo3}, 1152, {vo3}\nv_and_b32 {t0}, 3, v0\nv_lshl_add_u32 {vo3}, {t0}, 4, {vo3}')
    a(f's_lshl_b32 {sB0}, {sH}, 8\ns_lshl_b32 {sTMP}, {sW}, 6\ns_add_u32 {sB0}, {sB0}, {sTMP}')
    a(f's_mul_i32 {sB1}, {sH}, {128 * 1152}\ns_mul_i32 {sTMP}, {sW}, 288\ns_add_u32 {sB1}, {sB1}, {sTMP}')
    ldsu = [('q', 0), ('q', 1), ('q', 7), ('k', 4), ('v', 1), ('o', 0, 0), ('o', 1, 0), ('o', 2, 1), ('o', 3, 1)]
    allu = [(m, k) for m in 'qkv' for k in range(9)] + [('o', p, k) for p in range(5) for k in range(2)]
    order = [u for u in allu if u not in ldsu] + ldsu
    pool = [('a', 8 * i) for i in range(32)] + [('v', 80 + 8 * i) for i in range(22)]
    W = {}
    units = []
    for ui, u in enumerate(order):
        if u[0] == 'o':
            keys = [('o', 2 * u[1], u[2]), ('o', 2 * u[1] + 1, u[2])]
            src = (WO, vo3, sB1, [(64 * u[2] + 4 * q) * 1152 + 64 * u[1] for q in range(4)])
        else:
            keys = [(u[0], 0, u[1]), (u[0], 1, u[1])]
            kap = u[1]
            s_ = {'q': WQ, 'k': WK, 'v': WV}[u[0]]
            if kap < 8: src = (s_, vo1, sB0, [(144 * (2 * (kap & 1) + (q >> 1)) + 32 * ((kap >> 1) ^ 2) + (q & 1)) * 8192 for q in range(4)])
            else: src = (s_, vo2, sB0, [(288 * (q >> 1) + 128 + 2 * (q & 1)) * 8192 for q in range(4)])
        pm = u[0] in 'qk'
        if u in ldsu:
            for T in range(2): W[keys[T]] = ('lds', (ui % 9) * 4096 + T * 2048)
            units.append(src + ('lds', None, pm))
        else:
            d = []
            for T in range(2):
                if keys[T][0] == 'o' and keys[T][1] == 9: d.append(None)
                else:
                    W[keys[T]] = pool.pop(0); d.append(W[keys[T]])
            units.append(src + tuple(d) + (pm,))
    assert not pool
    load_units(a, units, vTR, LW, sLB, sTMP, 32, vPR=vPR)
    rts(a, 30, None, 1)
    bits(a, AR, t0, [(2, 2, 8), (0, 1, 7), (4, 2, 5), (1, 1, 4)])
    a(f'v_and_b32 {t0}, 8, v0\nv_lshlrev_b32 {t0}, 3, {t0}\nv_xor_b32 {AR}, {AR}, {t0}\nv_add_u32 {AR}, {MEM}, {AR}')
    bits(a, QR, t0, [(3, 1, 10), (3, 1, 5), (0, 3, 6), (4, 2, 4)], QX)
    a(f's_lshl_b32 {sTMP}, {sW}, 9\ns_lshr_b32 {sT2}, {sW}, 1\ns_lshl_b32 {sT2}, {sT2}, 5\ns_add_u32 {sTMP}, {sTMP}, {sT2}\ns_add_u32 {sTMP}, {sTMP}, {QX}')
    bits(a, QW, t0, [(4, 2, 7), (0, 4, 2)], sTMP)
    bits(a, KR, t0, [(1, 1, 10), (1, 1, 5), (2, 2, 7), (0, 1, 6), (4, 2, 4)], KXM)
    bits(a, OR, t0, [(1, 1, 9), (1, 1, 5), (2, 2, 7), (0, 1, 6), (4, 2, 4)], QX)
    bits(a, L2, t0, [(0, 6, 1)])
    bits(a, RR, t0, [(3, 3, 0)])
    a(f'v_mul_u32_u24 {RR}, 9216, {RR}\nv_and_b32 {t0}, 7, v0\nv_lshl_add_u32 {RR}, {t0}, 4, {RR}')
    a('s_mov_b32 s24, 0x00ff00ff\ns_mov_b32 s25, 0x00ff00ff')
    a(f's_cmp_ge_u32 {sW}, 2\ns_cselect_b32 s26, 0xff00ff00, s24\ns_mov_b32 s27, s26')
    a('s_mov_b32 s28, -1\ns_mov_b32 s29, 0\ns_mov_b32 s80, 0xaaaaaaaa\ns_mov_b32 s81, 0xaaaaaaaa')
    a(f's_cmp_eq_u32 {sW}, 2\ns_cselect_b32 s80, 0xf0f0f0f0, s80\ns_mov_b32 s81, s80')
    for p in range(4):
        m8 = 0x11111111 << p
        mm = sum(1 << m for m in range(16) if 2 * ((m >> 1) & 1) + ((m >> 2) & 1) == p) * 0x10001
        a(f's_mov_b32 s{SM + 2 * p}, {mm:#x}\ns_cselect_b32 s{SM + 2 * p}, {m8:#x}, s{SM + 2 * p}\ns_mov_b32 s{SM + 2 * p + 1}, s{SM + 2 * p}')
    a(f's_mov_b32 {sC}, {CSC:#x}\ns_mov_b32 {sS}, 0')
    a(f's_lshl_b32 {sKV}, {sL}, 5\ns_add_u32 {sKV}, {sKV}, {sH}\ns_lshl_b32 {sKVM}, {sKV}, 18\ns_lshl_b32 {sKV}, {sKV}, 20')
    a(f's_add_u32 {sKV}, {sKV}, {L.KV:#x}\ns_add_u32 {sKVM}, {sKVM}, {L.KVM:#x}')
    a(f's_and_b32 {sKO}, {sW}, 1\ns_lshl_b32 {sKO}, {sKO}, 12\ns_lshr_b32 {sTMP}, {sW}, 1\ns_lshl_b32 {sTMP}, {sTMP}, 11\ns_add_u32 {sKO}, {sKO}, {sTMP}\ns_sub_u32 {sKO}, {sKO}, {sLB}')
    a(f's_lshl_b32 {sVO}, {sW}, 11\ns_add_u32 {sVO}, {sVO}, 8192\ns_sub_u32 {sVO}, {sVO}, {sLB}')
    a(f's_mul_i32 {sM0}, {sL}, {L.MR_L:#x}\ns_add_u32 {sM0}, {sM0}, {L.MR:#x}\ns_add_u32 {sM1}, {sM0}, {L.SLOT}\ns_add_u32 {sM2}, {sM0}, {2 * L.SLOT}')
    a(f's_mul_i32 {sPO}, {sH}, 9216\ns_add_u32 {sPO}, {sPO}, 9216')
    a(f'''s_lshl_b32 {sU}, {sW}, 5
    s_add_u32 {sU}, {sU}, {sH}
    s_lshr_b32 {sTMP}, {sH}, 2
    s_add_u32 {sTMP}, {sTMP}, 64
    s_cmp_eq_u32 {sW}, 2
    s_cselect_b32 {sU}, {sTMP}, {sU}
    s_lshl_b32 {sU}, {sU}, 7
    s_and_b32 {sTMP}, {sH}, 3
    s_cmp_eq_u32 {sTMP}, 0
    s_cselect_b32 {sTMP}, 3, 2
    s_cmp_ge_u32 {sW}, {sTMP}
    s_cselect_b32 {sU}, -1, {sU}''')
    a(f's_lshl_b32 {sFK}, {sL}, 5\ns_add_u32 {sFK}, {sFK}, {sH}\ns_lshl_b32 {sFK}, {sFK}, 8\ns_add_u32 {sFK}, {sFK}, {L.FKV:#x}')
    a(f's_and_b32 {sSW}, {sW}, 1\ns_mul_i32 {sSW}, {sSW}, 1056\ns_lshr_b32 {sTMP}, {sW}, 1\ns_mul_i32 {sTMP}, {sTMP}, 544\ns_sub_u32 {sSW}, {sSW}, {sTMP}\ns_add_u32 {sSW}, {sSW}, {SX - QX}')
    a(f's_mul_i32 {sOW}, {sW}, 544\ns_lshl_b32 {sMW}, {sW}, 11\ns_lshl_b32 {sMB}, {sW}, 8\ns_add_u32 {sMB}, {sMB}, 8192')
    a(f'''s_lshr_b32 {sT2}, {sU}, 3
    s_lshr_b32 {sT3}, {sU}, 2
    s_xor_b32 {sT2}, {sT2}, {sT3}
    s_and_b32 {sT2}, {sT2}, 64
    s_and_b32 {sT3}, {sU}, 0x3c00
    s_add_u32 {sB0}, {sT2}, {sT3}
    s_and_b32 {sT3}, {sU}, 0x180
    s_lshl_b32 {sT3}, {sT3}, 1
    s_add_u32 {sB0}, {sB0}, {sT3}
    s_cmp_lt_u32 {sW}, 2
    s_cselect_b32 {sT3}, 0x1000, 0
    s_xor_b32 {sB0}, {sB0}, {sT3}''')
    bits(a, RW, t0, [(0, 4, 2), (4, 1, 7)], sB0)
    a(f'v_bfe_u32 {t0}, v0, 1, 1\nv_mul_u32_u24 {t0}, 0xaaaa, {t0}\nv_add_u32 {IDX}, 0x4444, {t0}')
    a(f'''s_mov_b32 {sRA}, 0
    s_mov_b32 {sRB}, {sM0}
    s_mov_b32 {sRM}, {L.RING_END:#x}
    s_lshr_b32 {sP0}, {sW}, 1
    s_lshl_b32 {sP0}, {sP0}, 5
    s_add_u32 {sP0}, {sP0}, {QX}
    s_lshl_b32 {sTMP}, {sH}, 7
    s_cmp_eq_u32 {sU}, -1
    s_cselect_b32 {sUR}, {sTMP}, {sU}
    s_lshl_b32 {sM4}, {sW}, 10
    s_lshr_b32 {sP8}, {sW}, 1
    s_lshl_b32 {sP8}, {sP8}, 9
    s_and_b32 {sTMP}, {sW}, 1
    s_lshl_b32 {sTMP}, {sTMP}, 6
    s_add_u32 {sP8}, {sP8}, {sTMP}
    s_add_u32 {sP8}, {sP8}, 8192
    s_lshl_b32 {sTO}, {sW}, 12
    s_add_u32 {sTO}, {sTO}, {0 if FIXKV else 16384}
    s_mov_b32 s96, 0x3f803f80
    s_mov_b32 s97, 0x3f803f80''')
    def pollkv(sfl):
        lp, dn = a.lab('pl'), a.lab('pd')
        a(f'''{lp}:
        buffer_load_ushort {JK}, {L2}, {WS}, {sfl} offen sc1
        v_cmp_gt_u32 vcc, {sNEED}, {JK}
        s_cbranch_vccz {dn}
        s_sub_u32 {sBUD}, {sBUD}, 1
        s_cbranch_scc0 {lp}
        s_mov_b32 {sBUD}, 0
        {dn}:''')
    a(f's_mov_b32 {sNEED}, 1')
    pollkv(sFK)
    KX, VX = KV, Yb
    ldKV = lambda r, so: [f'buffer_load_dwordx4 {vr(r, 4)}, {LW}, {WS}, {so} offen sc1', f'buffer_load_dwordx4 {vr(r + 4, 4)}, {LW}, {WS}, {so} offen offset:1024 sc1']
    a(f's_add_u32 {sTMP}, {sKV}, {sKO}\ns_add_u32 {sKO}, {sKO}, {0 if FIXKV else 16384}')
    for x in ldKV(KX, sTMP): a(x)
    def ldfrag(key, buf):
        off = W[key][1]
        return [f'ds_read_b128 {vr(buf, 4)}, {LW} offset:{off}', f'ds_read_b128 {vr(buf + 4, 4)}, {LW} offset:{off + 1024}']
    fb = {('q', 0, 0): ACK, ('q', 1, 0): VX, ('q', 0, 1): X, ('q', 1, 1): Z, ('q', 0, 7): X, ('q', 1, 7): Z,
          ('k', 0, 4): X, ('k', 1, 4): Z, ('v', 0, 1): X, ('v', 1, 1): KX,
          ('o', 0, 0): VX, ('o', 1, 0): ACK, ('o', 2, 0): VX, ('o', 3, 0): ACK, ('o', 4, 1): VX, ('o', 5, 1): ACK, ('o', 6, 1): 24, ('o', 7, 1): VX}
    assert set(fb) == {k for k in W if W[k][0] == 'lds'}
    wop = lambda key: vr(fb[key], 8) if key in fb else vr(W[key][1], 8, W[key][0])
    lf = lambda key: ldfrag(key, fb[key])
    aslot = lambda k: AQ + 4 * (k % 4)
    rdA = lambda k: f'ds_read_b128 {vr(aslot(k), 4)}, {AR} offset:{k * 1024}'
    z2 = lambda r: f'v_mov_b64 {vr(r, 2)}, 0'
    pre = [('q', 0, 0), ('q', 0, 1), ('q', 1, 0), ('q', 1, 1)]
    acc = {'q': ACQ, 'k': ACK, 'v': Z}
    sm = lambda m, T, k: f'{SMF} {vr(acc[m] + 4 * T, 4)}, {vr(aslot(k), 4)}, {wop((m, T, k))}, {IDX}'

    ool = []
    LOOP, XIT, REDO = a.lab('cloop'), a.lab('cexit'), a.lab('credo')
    a(f's_branch {REDO}x')
    a(f'{REDO}:\ns_waitcnt vmcnt(0) lgkmcnt(0)\n{REDO}x:')
    for k in (pre[0], pre[3]):
        for x in lf(k): a(x)
    a(f'{LOOP}:')
    i_loop = len(a.ins)
    a(f"""s_add_u32 {sTMP}, {sM0}, {sM4}
    s_sub_u32 {sTMP}, {sTMP}, {sLB}
    s_add_u32 m0, {sM4}, {MEM}""")
    a('s_barrier')
    if DEBUG: a('s_memtime s[98:99]')
    for r in range(ACQ, ACQ + 8, 2): a(z2(r))
    a(f"""v_lshlrev_b32 {TA}, 1, {L2}
    s_add_u32 {sTO}, {sTMP}, 4096
    s_add_u32 {sT2}, {sM0}, {sMB}
    s_add_u32 {sT3}, {sKV}, {sVO}
    s_add_u32 {sS1}, {sS}, 1
    s_mov_b32 {sPV}, 0
    s_and_b32 {sPF}, {sS1}, 1
    s_lshl_b32 {sPF}, {sPF}, 7
    s_add_u32 {sPF}, {sPF}, {sFK}
    s_lshr_b32 {sNEED}, {sS1}, 1
    s_add_u32 {sNEED}, {sNEED}, 1
    s_min_u32 {sNEED}, {sNEED}, 32""")
    for _ in range(OPT.get('dB', 8)): a('s_nop 3')
    tb0, tb1 = a.tok('b'), a.tok('b')
    shot = f'buffer_load_dwordx4 {LW}, {WS}, {sTMP} offen sc1 lds'
    rest = f"""s_add_u32 m0, {sM4}, {MEM + 4096}
    buffer_load_dwordx4 {LW}, {WS}, {sTO} offen sc1 lds
    s_add_u32 m0, {sMB}, {MEM}
    buffer_load_dword {TA}, {WS}, {sT2} offen sc1 lds
    s_add_u32 m0, {sM4}, {MEM}"""
    a(shot, tok=tb0)
    for k in (pre[1], pre[2]):
        for x in lf(k): a(x)
    for _ in range(OPT.get('dS', 3)): a('s_nop 3')
    a(rest)
    a(shot)
    a.wait(tb0)
    BG = a.lab('bg')
    a(f's_barrier\n{BG}:')
    br = a.lab('br')
    ool.append(f"""{br}:
    s_sub_u32 {sBUD}, {sBUD}, 1
    s_cbranch_scc1 {br}c
    v_mov_b64 {vr(ACQ, 2)}, 0
    v_mov_b64 {vr(ACQ + 2, 2)}, 0
    v_mov_b64 {vr(ACQ + 4, 2)}, 0
    v_mov_b64 {vr(ACQ + 6, 2)}, 0
    s_add_u32 {sPV}, {sPV}, 1
    s_cmp_lt_u32 {sPV}, 2
    s_waitcnt vmcnt(0)
    s_cbranch_scc1 {br}d
    {rest}
    {br}d:
    {shot}
    s_branch {BG}
    {br}c:
    s_mov_b32 {sBUD}, 0
    s_branch {br}b""")
    i_s0 = len(a.ins)
    stamp(a, 0)
    if DEBUG: a(f's_mov_b32 s76, {sBUD}')
    st = Stream(a)
    for k in range(9):
        for T in range(2): st.mf(sm('q', T, k))
    sx = [f'{MF32} {vr(SC, 4)}, {vr(KX, 4)}, {vr(ACQ, 4)}, 0', f'{MF32} {vr(SC, 4)}, {vr(KX + 4, 4)}, {vr(ACQ + 4, 4)}, {vr(SC, 4)}']
    for k in range(8, -1, -1):
        if k == 2:
            for x in sx: st.mf(x)
        for T in range(2): st.mf(sm('k', T, k))
    def D(*items):
        for p, x in items: st.add(p, 'D', x)
    st.add(-1, 'D', *[rdA(k) for k in range(4)])
    st.add(1, 'S', lambda: a.need(vr(AQ, 12))); st.add(1, 'V', f'v_max3_u32 v{SC}, v{AQ}, v{AQ + 4}, v{AQ + 8}')
    st.add(2, 'S', lambda: a.need(vr(AQ, 16))); st.add(2, 'V', f'v_max_u32 v{SC}, v{SC}, v{AQ + 12}')
    st.add(3, 'V', f'v_cmp_eq_u32 vcc, -1, v{SC}')
    st.add(4, 'X', 's_waitcnt vmcnt(1)', f's_cbranch_vccnz {br}', f'{br}b:', 's_barrier', rdA(4))
    fx, fz = lf(('q', 0, 7)), lf(('q', 1, 7))
    lv = ldKV(VX, sT3)
    D((5, rdA(5)), (6, f'buffer_load_ushort {JK}, {L2}, {WS}, {sPF} offen sc1'), (6, rdA(6)), (7, fx[0]), (8, fx[1]), (9, rdA(7)), (10, fz[0]), (11, fz[1]), (12, rdA(8)), (13, lv[0]))
    fx, fz = lf(('k', 0, 4)), lf(('k', 1, 4))
    D((14, fx[0]), (15, fx[1]), (16, fz[0]), (17, fz[1]), (18, lv[1]))
    D((19, rdA(4)), (21, rdA(3)), (23, rdA(2)), (25, rdA(1)), (28, rdA(0)))
    for i, p in enumerate((5, 7, 8, 9)): st.add(p, 'V', z2(ACK + 2 * i))
    st.add(10, 'V', f'v_mov_b32 v{SC}, -1')
    st.add(11, 'V', f'v_add_u32 {TA}, {sSW}, {QR}')
    st.add(12, 'S', f'buffer_store_short v{SC}, {L2}, {WS}, {sRM} offen')
    st.add(8, 'S', f's_add_u32 {sTMP}, {sKV}, {sKO}'); st.add(20, 'S', f's_sub_u32 {sT3}, {sKVM}, {sP0}')
    def epi(acc_, pk):
        ad = [f'v_add_f32 v{acc_ + i}, v{acc_ + i}, v{acc_ + i + 2}' for i in (0, 1, 4, 5)]
        if pk == 'T': cv = [f'v_cvt_pk_bf16_f32 v{acc_}, v{acc_}, v{acc_+4}', f'v_cvt_pk_bf16_f32 v{acc_+1}, v{acc_+1}, v{acc_+5}']
        else: cv = [f'v_cvt_pk_bf16_f32 v{acc_}, v{acc_}, v{acc_+1}', f'v_cvt_pk_bf16_f32 v{acc_+1}, v{acc_+4}, v{acc_+5}']
        return ad + cv
    tq, tk, tkm, trs = a.tok('q'), a.tok('k'), a.tok('km'), a.tok('rs')
    e = epi(ACQ, 'T')
    st.add(19, 'V', e[0], e[1]); st.add(20, 'V', e[2], e[3]); st.add(21, 'V', e[4], e[5])
    st.add(22, 'D', lambda: a(f'ds_write2_b32 {QW}, v{ACQ}, v{ACQ + 1} offset1:16', tok=tq))
    st.add(22, 'V', f'v_cmp_u_f32 vcc, v{ACQ + 4}, v{ACQ + 5}')
    rd = a.lab('rd')
    st.add(24, 'S', f's_cbranch_vccnz {rd}', f'{rd}b:')
    for i, p in enumerate((28, 29, 32, 33)): st.add(p, 'V', z2(Z + 2 * i))
    st.add(26, 'X', lambda: a.wait(tq), 's_barrier', f'ds_read_b128 {vr(ACQ, 4)}, {QR}', f'ds_read_b128 {vr(ACQ + 4, 4)}, {QR} offset:512')
    fx, fz = lf(('v', 0, 1)), lf(('v', 1, 1))
    D((29, fx[0]), (30, fx[1]), (32, fz[0]), (33, fz[1]))
    st.add(34, 'X', f's_mov_b64 exec, {HFW}', f'ds_write_b128 {TA}, {vr(SC, 4)}', 's_mov_b64 exec, -1')
    fk = a.lab('fk')
    ool.append(f"""{fk}:
    buffer_load_ushort {JK}, {L2}, {WS}, {sPF} offen sc1
    v_cmp_gt_u32 vcc, {sNEED}, {JK}
    s_cbranch_vccz {fk}b
    s_sub_u32 {sBUD}, {sBUD}, 1
    s_cbranch_scc0 {fk}
    s_mov_b32 {sBUD}, 0
    s_branch {fk}b""")
    vp = {}
    def vq(n):
        for _ in range(n):
            i = len(vp); vp[i] = st.mf(sm('v', i & 1, i >> 1))
            if i & 1 and (i >> 1) + 4 < 9: st.add(vp[i], 'D', rdA((i >> 1) + 4))
        return len(st.m) - 1
    p = vq(2)
    e = epi(ACK, 'T')
    st.add(p, 'X', e[0], e[2], e[4], f'ds_write_b32 {QW}, v{ACK} offset:{KXM - QX}', e[1], e[3], e[5],
           lambda: a(f'ds_write_b32 {QW}, v{ACK + 1} offset:{KXM - QX + 64}', tok=tk))
    p = vq(1); st.add(p, 'D', f'buffer_store_dword v{ACK}, {QW}, {WS}, {sT3} offen sc1')
    p = vq(1); st.add(p, 'S', f's_lshr_b32 {sT2}, {sMW}, 2')
    p = vq(1); st.add(p, 'D', f'buffer_store_dword v{ACK + 1}, {QW}, {WS}, {sT3} offen offset:64 sc1')
    p = vq(1)
    S0, S1 = X, X + 4
    st.add(SPOS if SPOS is not None else p, 'S', lambda: stamp(a, 5))
    st.add(p, 'X', lambda: a.wait(tk), 's_barrier', f'ds_read_b128 {vr(ACK, 4)}, {KR}', f'ds_read_b128 {vr(ACK + 4, 4)}, {KR} offset:512',
           f'ds_read_b128 {vr(S0, 4)}, {QR} offset:{SX - QX}', f'ds_read_b128 {vr(S1, 4)}, {QR} offset:{SX - QX + 512}')
    P, PMa, PMb = ACK, ACK + 4, ACK + 6
    lk = ldKV(KX, sTMP)
    p = vq(1); st.add(p, 'S', f's_add_u32 {sT3}, {sT2}, {sKVM}')
    p = vq(1); st.add(p, 'S', lambda: a.need(JK)); st.add(p, 'V', f'v_cmp_gt_u32 vcc, {sNEED}, {JK}')
    def dbgst():
        a(f's_lshl_b32 {sTO}, {sL}, 5\ns_add_u32 {sTO}, {sTO}, {sH}\ns_lshl_b32 {sTO}, {sTO}, 2\ns_add_u32 {sTO}, {sTO}, {sW}\ns_lshl_b32 {sTO}, {sTO}, 6\ns_add_u32 {sTO}, {sTO}, {sS}\ns_lshl_b32 {sTO}, {sTO}, 6\ns_add_u32 {sTO}, {sTO}, {L.DBG:#x}')
        for i in range(10): a(f'v_writelane_b32 {TA}, s{32 + i}, {i}')
        a(f'v_lshlrev_b32 v{SC}, 1, {L2}\ns_mov_b64 exec, 0x3ff\nbuffer_store_dword {TA}, v{SC}, {WS}, {sTO} offen\ns_mov_b64 exec, -1')
    if DEBUG: st.add(p, 'X', dbgst)
    if TIMELINE: st.add(p, 'X', lambda: rts(a, SC, sS, 2))
    p = vq(1); st.add(p, 'S', f's_cbranch_vccnz {fk}', f'{fk}b:'); st.add(p, 'D', lk[0]); st.add(p, 'V', f'v_lshlrev_b32 {JK}, 2, {L2}')
    p = vq(OPT.get('v1', 3) - 1)
    p = st.mf(f'{MF32} {vr(SC, 4)}, {vr(ACK, 4)}, {vr(ACQ, 4)}, 0')
    st.add(p, 'D', lk[1])
    p = st.mf(f'{MF32} {vr(SC, 4)}, {vr(ACK + 4, 4)}, {vr(ACQ + 4, 4)}, {vr(SC, 4)}')
    EM, MX, TT = S1, S1 + 1, S1 + 2
    st.add(p, 'V', *[f'v_add_f32 v{S0 + r}, v{S0 + r}, v{S1 + r}' for r in range(4)])
    st.add(p, 'V', f'v_max3_f32 v{MX}, v{S0}, v{S0+1}, v{S0+2}', f'v_mov_b32 v{PMa + 1}, 0', f'v_mov_b32 v{PMb}, 0', f'v_add_u32 {TA}, {sOW}, {QR}')
    st.add(p, 'V', f'v_add_f32_dpp v{EM}, v{SC+2}, v{SC} row_ror:8 row_mask:0xf bank_mask:0x3', f'v_add_f32_dpp v{EM}, v{SC+1}, v{SC+3} row_ror:8 row_mask:0xf bank_mask:0xc',
           f'v_max3_f32 v{MX}, v{MX}, v{S0+3}, v{EM}')
    ON = SC
    p = vq(1); st.add(p, 'V', f'v_max_f32_dpp v{MX}, v{MX}, v{MX} row_ror:8 {DPPF}', f'v_mov_b32 v{TT}, v{MX}')
    p = vq(1); st.add(p, 'V', f'v_permlane16_swap_b32 v{TT}, v{MX}', f'v_max_f32 v{MX}, v{MX}, v{TT}', f'v_mov_b32 v{TT}, v{MX}')
    p = vq(1); st.add(p, 'V', f'v_permlane32_swap_b32 v{TT}, v{MX}', f'v_max_f32 v{MX}, v{MX}, v{TT}', f'v_mul_f32 v{MX}, {sC}, v{MX}')
    sv = list(range(S0, S0 + 4)) + [EM]
    st.add(p, 'V', *[f'v_fma_f32 v{r}, v{r}, {sC}, -v{MX}' for r in sv])
    rem = 18 - len(vp) - 2
    if rem > 0: p = vq(rem)
    st.add(p, 'V', *[f'v_exp_f32 v{r}, v{r}' for r in sv])
    st.add(p, 'V', f'v_cvt_pk_bf16_f32 v{P}, v{S0}, v{S0+1}', f'v_cvt_pk_bf16_f32 v{P+1}, v{S0+2}, v{S0+3}')
    p = vq(1); st.add(p, 'V', f'v_mov_b32_dpp v{P+2}, v{P} row_ror:8 {DPPF}', f'v_mov_b32_dpp v{P+3}, v{P+1} row_ror:8 {DPPF}')
    p = vq(1); st.add(p, 'V', f'v_mov_b32_dpp v{TT}, v{EM} row_ror:8 {DPPF}')
    assert len(vp) == 18
    O0, O1, SU = ACQ, ACQ + 4, S0
    p = st.mf(f'{MF32} {vr(O0, 4)}, {vr(VX, 4)}, {vr(P, 4)}, 0')
    st.add(p, 'V', f'v_mov_b64 {vr(ON, 2)}, s[96:97]', f'v_mov_b64 {vr(ON + 2, 2)}, s[96:97]')
    p = st.mf(f'{MF32} {vr(O1, 4)}, {vr(VX + 4, 4)}, {vr(P, 4)}, 0')
    st.add(p, 'V', f'v_cvt_pk_bf16_f32 v{PMa}, v{EM}, v{TT}', f'v_cvt_pk_bf16_f32 v{PMb+1}, v{EM}, v{TT}')
    p = st.mf(f'{MF32} {vr(SU, 4)}, {vr(ON, 4)}, {vr(P, 4)}, 0')
    f = lf(('o', 0, 0)); st.add(p, 'D', f[0])
    st.add(p, 'V', *epi(Z, 'R'))
    p = st.mf(f'{MF16} {vr(SU, 4)}, {vr(ON, 2)}, {vr(PMa, 2)}, {vr(SU, 4)}'); st.add(p, 'D', f[1])
    p = st.mf(f'{MF16} {vr(O0, 4)}, {vr(Z, 2)}, {vr(PMa, 2)}, {vr(O0, 4)}')
    st.add(p, 'D', f'buffer_store_dwordx2 {vr(Z, 2)}, {JK}, {WS}, {sT3} offen offset:{L.KVM_V} sc1'); st.add(p, 'V', z2(24))
    p = st.mf(f'{MF16} {vr(O1, 4)}, {vr(Z, 2)}, {vr(PMb, 2)}, {vr(O1, 4)}')
    st.add(p, 'D', *lf(('o', 1, 0)))
    for i_, p_ in zip((1, 3, 4, 5), PROF): st.add(p_, 'S', lambda i_=i_: stamp(a, i_, True))
    st.emit()
    stamp(a, 1)
    oacc = {0: 24, 1: 28, 2: 32, 3: 36, 4: X, 5: X + 4, 6: ACQ + 4, 7: ACQ, 8: SC}
    a(z2(26))
    a(f'v_rcp_f32 v{SU}, v{SU}')
    a(z2(28)); a(z2(30))
    for r in range(0, 8, 2): a(f'v_pk_mul_f32 {vr(O0 + r, 2)}, {vr(O0 + r, 2)}, {vr(SU, 2)} op_sel_hi:[1,0]')
    a(f's_mov_b64 exec, {LO8}')
    for r in range(4): a(f'v_cvt_pk_bf16_f32 v{O0 + r}, v{O0 + 2 * r}, v{O0 + 2 * r + 1}')
    a(f'ds_write_b128 {TA}, {vr(O0, 4)}\ns_mov_b64 exec, -1')
    for r in list(range(32, 40, 2)) + list(range(X, X + 8, 2)) + [SC, SC + 2]: a(z2(r))
    a(f'v_and_b32 {TA}, 0x60, {L2}\nv_add_lshl_u32 {TA}, {TA}, {L2}, 1')
    a('s_waitcnt lgkmcnt(0)\ns_barrier')
    a(f'ds_read_b128 {vr(Z, 4)}, {OR}\nds_read_b128 {vr(Z + 4, 4)}, {OR} offset:1088')
    for r in range(ACQ, ACQ + 8, 2): a(z2(r))
    a(f's_add_u32 {sTMP}, {sM0}, {sPO}\ns_add_u32 {sT3}, {sTMP}, {sT2}\ns_add_u32 {sT2}, {sTMP}, {sP8}\ns_add_u32 {sTMP}, {sT3}, 4096')
    a(f's_add_u32 {sRM}, {sM0}, {sUR}')
    for i in range(4): a(f's_add_u32 {sR[i]}, {sRM}, {(8 * i + 1) * 9216}')
    stamp(a, 2)
    if DEBUG: a('s_memrealtime s[100:101]')
    oseq = [(0, 0), (1, 0), (0, 1), (1, 1), (8, 0), (8, 1), (2, 0), (3, 0), (2, 1), (3, 1), (4, 0), (5, 0), (4, 1), (5, 1), (6, 0), (7, 0), (6, 1), (7, 1)]
    st = Stream(a)
    for T, k in oseq: st.mf(f'{SMF} {vr(oacc[T], 4)}, {vr(Z + 4 * k, 4)}, {wop(("o", T, k))}, {IDX}')
    f = lf(('o', 2, 0)) + lf(('o', 3, 0))
    for i in range(4): st.add(i, 'D', f[i])
    f = lf(('o', 4, 1)) + lf(('o', 5, 1)) + lf(('o', 6, 1)) + lf(('o', 7, 1))
    for i in range(8): st.add(6 + i, 'D', f[i])
    def oepi(p, pk=False):
        A, B = oacc[2 * p], oacc[2 * p + 1]
        if pk: ad = [f'v_pk_add_f32 {vr(A, 2)}, {vr(A, 2)}, {vr(A + 2, 2)}', f'v_pk_add_f32 {vr(B, 2)}, {vr(B, 2)}, {vr(B + 2, 2)}']
        else: ad = [f'v_add_f32 v{A}, v{A}, v{A+2}', f'v_add_f32 v{A+1}, v{A+1}, v{A+3}', f'v_add_f32 v{B}, v{B}, v{B+2}', f'v_add_f32 v{B+1}, v{B+1}, v{B+3}']
        return ad + [f'v_cvt_pk_bf16_f32 v{A}, v{A}, v{B}', f'v_cvt_pk_bf16_f32 v{A + 1}, v{A+1}, v{B+1}', f'v_and_or_b32 v{A}, v{A}, -2, {sRA}']
    pst = lambda p: f'buffer_store_dwordx2 {vr(oacc[2 * p], 2)}, {JK}, {WS}, {[sT3, sTMP][p >> 1]} offen offset:{(p & 1) * 2048}'
    for x, p in zip(oepi(0), [5, 5, 6, 6, 7, 7, 7]): st.add(p, 'V', x)
    st.add(8, 'S', pst(0))
    st.add(8, 'V', f'v_add_f32 v{SC}, v{SC}, v{SC+2}'); st.add(9, 'V', f'v_add_f32 v{SC+1}, v{SC+1}, v{SC+3}'); st.add(10, 'V', f'v_cvt_pk_bf16_f32 v{SC}, v{SC}, v{SC+1}', f'v_and_or_b32 v{SC}, v{SC}, -2, {sRA}')
    st.add(11, 'S', f'buffer_store_dword v{SC}, {TA}, {WS}, {sT2} offen')
    for x, p in zip(oepi(1), [11, 11, 12, 12, 13, 13, 13]): st.add(p, 'V', x)
    st.add(14, 'D', pst(1))
    for x, p in zip(oepi(2), [15, 15, 16, 16, 17, 17, 17]): st.add(p, 'V', x)
    st.add(17, 'X', pst(2))
    st.emit()
    for x in oepi(3, True): a(x)
    a(pst(3))
    stamp(a, 3)
    a(f's_add_u32 {sS}, {sS}, 1\ns_cmp_eq_u32 {sS}, {NSTEPS}\ns_cbranch_scc1 {XIT}')
    a(f's_add_u32 {sKV}, {sKV}, {0 if FIXKV else 16384}\ns_add_u32 {sKVM}, {sKVM}, 4096')
    i_s1 = len(a.ins)
    nr, pb = a.lab('nr'), a.lab('pb')
    a(f's_cmp_eq_u32 {sU}, -1\ns_cbranch_scc1 {nr}')
    a(f's_cmp_lg_u32 {sW}, 1\ns_cbranch_scc1 {nr}e')
    for _ in range(OPT.get('dA', 12)): a('s_nop 3')
    a(f'{nr}e:')
    SET = [24, X]
    def ashot(k):
        for i in range(4): a(f'buffer_load_dwordx4 {vr(SET[k] + 4 * i, 4)}, {RR}, {WS}, {sR[i]} offen sc1')
    def ared(k):
        b = SET[k]
        for i in range(4):
            a(f'{MF32} v[44:47], v[40:43], {vr(b + 4 * i, 4)}, {"0" if i == 0 else "v[44:47]"}')
            a(f'v_bitop3_b32 v{SC + i % 2 + (i > 1)}, v{b + 4 * i}, v{b + 4 * i + 2}, {sRA} bitop3:0x7e')
            if i == 1: a(f'v_or_b32 v{SC}, v{SC}, v{SC + 1}')
        a(f'v_or3_b32 v{SC}, v{SC}, v{SC + 1}, v{SC + 2}\nv_and_b32 v{SC}, 1, v{SC}\nv_cmp_ne_u32 vcc, 0, v{SC}')
    ashot(0)
    a(f'v_mov_b32 v44, 0x3f80\nv_mov_b32 v45, 0x3f800000\nv_cndmask_b32 v44, v44, v45, {ODD}')
    for p in range(4): a(f'v_cndmask_b32 v{40 + p}, 0, v44, s[{SM + 2 * p}:{SM + 2 * p + 1}]')
    for k in (pre[0], pre[3]):
        for x in lf(k): a(x)
    for _ in range(OPT.get('dT', 12)): a('s_nop 3')
    ashot(1)
    lp = a.lab('ha')
    a(f'{lp}:')
    ared(0)
    a(f's_cbranch_vccnz {lp}r\n{pb}:')
    a(f'''s_mov_b64 exec, {L32}
    v_add_f32_dpp v{SC}, v44, v44 row_ror:8 row_mask:0xf bank_mask:0x3
    v_add_f32_dpp v{SC + 1}, v45, v45 row_ror:8 row_mask:0xf bank_mask:0x3
    v_add_f32_dpp v{SC}, v46, v46 row_ror:8 row_mask:0xf bank_mask:0xc
    v_add_f32_dpp v{SC + 1}, v47, v47 row_ror:8 row_mask:0xf bank_mask:0xc
    v_cvt_pk_bf16_f32 v44, v{SC}, v{SC + 1}
    buffer_store_dword v44, {RW}, {WS}, {sM1} offen
    s_mov_b64 exec, -1''')
    def aretry():
        a(f'{lp}r:')
        ashot(0)
        a(f's_sub_u32 {sBUD}, {sBUD}, 1\ns_cselect_b32 {sBUD}, 0, {sBUD}')
        ared(1)
        a(f's_cbranch_vccz {pb}')
        ashot(1)
        a(f's_sub_u32 {sBUD}, {sBUD}, 1\ns_cbranch_scc0 {lp}\ns_mov_b32 {sBUD}, 0\ns_branch {pb}')
    ool.append(aretry)
    a(f's_branch {nr}j')
    a(f'{nr}:')
    for k in (pre[0], pre[3]):
        for x in lf(k): a(x)
    a(f'{nr}j:')
    if OPT.get('nohop'):
        keep = []
        for i_, x in enumerate(a.ins):
            mn = getattr(x, 'mn', '')
            if i_loop <= i_ < i_s0:
                if x.kind == 'vmem' or mn == 's_nop': continue
            elif i_s0 <= i_ < i_s1:
                if OPT.get('novm') and x.kind == 'vmem': continue
                if OPT.get('nobr') and mn == 's_cbranch_vccnz': continue
                if OPT.get('nobar') and mn == 's_barrier': continue
                if OPT.get('nods') and mn == 'ds_read_b128' and (LW + ' ' in x.text or AR + ' ' in x.text): continue
                if OPT.get('nodw') and mn.startswith('ds_write'): continue
                if OPT.get('nova') and x.kind == 'valu': continue
            elif i_ >= i_s1 and not x.label and x.kind != 'ds': continue
            keep.append(x)
        a.ins = keep
    stamp(a, 4)
    if DEBUG:
        a('s_waitcnt lgkmcnt(0)')
        a(f's_mov_b32 s78, {sBUD}')
        for i in range(8): a(f's_mov_b32 s{32 + i}, s{64 + 2 * i}')
        a('s_mov_b32 s40, s98\ns_mov_b32 s41, s100')
    a(f's_mov_b32 {sTMP}, {sM0}\ns_mov_b32 {sM0}, {sM1}\ns_mov_b32 {sM1}, {sM2}\ns_mov_b32 {sM2}, {sTMP}')
    a(f's_cmp_eq_u32 {sM0}, {sRB}\ns_cselect_b32 {sTMP}, 1, 0\ns_xor_b32 {sRA}, {sRA}, {sTMP}')
    if LIGHT:
        a(f's_cmp_lg_u32 {sS}, 8\ns_cbranch_scc1 {LOOP}\ns_memtime s[98:99]\ns_mov_b32 s46, {sBUD}')
    a(f's_branch {LOOP}')
    a(f'{rd}:\ns_sub_u32 {sBUD}, {sBUD}, 64\ns_cbranch_scc0 {REDO}\ns_mov_b32 {sBUD}, 0\ns_branch {rd}b')
    for x in ool: x() if callable(x) else a(x)
    a(f'{XIT}:')
    if LIGHT:
        a(f's_memtime s[100:101]\ns_waitcnt lgkmcnt(0)\ns_sub_u32 s100, s100, s98\ns_sub_u32 s46, s46, {sBUD}\nv_mov_b32 v24, s100\nv_mov_b32 v25, s46')
        a(f's_lshl_b32 {sTMP}, {sL}, 5\ns_add_u32 {sTMP}, {sTMP}, {sH}\ns_lshl_b32 {sTMP}, {sTMP}, 2\ns_add_u32 {sTMP}, {sTMP}, {sW}\ns_lshl_b32 {sTMP}, {sTMP}, 3\ns_add_u32 {sTMP}, {sTMP}, {L.DBG:#x}')
        a(f's_mov_b64 exec, 1\nbuffer_store_dwordx2 v[24:25], {L2}, {WS}, {sTMP} offen')
    a('s_endpgm')

def gen_qkv(a):
    HB = 0; PK = 36864; PKS = 24576; KM = PK + 3 * PKS
    vA, vHD, vKM, vHR = 'v0', 'v1', 'v2', 'v3'
    sL, sH, sLB, sTMP, sB0, sPAR = 's11', 's12', 's13', 's14', 's15', 's16'
    sJ, sHS, sKV, sKVM, sO, sFKV, sFO, sARM, sNEED, sT2, sPW, sPR, sLBH, sC, sJA, sQO, sVO, sD, sFH, sW10, sDM = ['s%d' % i for i in range(52, 64)] + ['s%d' % i for i in range(17, 26)]
    MK = 64
    a('qkv:')
    a(f"""s_sub_u32 {sH}, {sX}, 2
    s_lshl_b32 {sH}, {sH}, 3
    s_and_b32 {sTMP}, {sT}, 7
    s_add_u32 {sH}, {sH}, {sTMP}
    s_lshr_b32 {sL}, {sT}, 4
    s_bfe_u32 {sPAR}, {sT}, 0x10003
    s_mul_i32 {sLB}, {sW}, 36864""")
    vTR, vo1, t0 = 'v20', 'v21', 'v24'
    mk_vTR(a, vTR, t0, sLB)
    bits(a, vo1, t0, [(0, 2, 4), (2, 4, 13)])
    a(f's_lshl_b32 {sB0}, {sH}, 8\ns_lshl_b32 {sTMP}, {sW}, 6\ns_add_u32 {sB0}, {sB0}, {sTMP}')
    pool = [('a', 8 * i) for i in range(32)] + [('v', 80 + 8 * i) for i in range(22)]
    W = {}; units = []
    for m in 'kvq':
        for kap in range(9):
            d = [pool.pop(0), pool.pop(0)]
            for T in range(2):
                for hh in range(2): W[(m, T, 2 * kap + hh)] = (d[T][0], d[T][1] + 4 * hh)
            units.append(({'q': WQ, 'k': WK, 'v': WV}[m], vo1, sB0, [(64 * kap + 16 * q) * 8192 for q in range(4)], d[0], d[1]))
    load_units(a, units, vTR, None, sLB, sTMP, None)
    rts(a, 30, None, 1)
    wf = lambda m, T, k: vr(W[(m, T, k)][1], 4, W[(m, T, k)][0])
    a(f's_and_b32 {sTMP}, {sW}, 1\ns_lshl_b32 {sTMP}, {sTMP}, 4\nv_and_b32 v24, 15, v0\nv_add_u32 v24, {sTMP}, v24\nv_lshrrev_b32 v25, 4, v0\nv_lshlrev_b32 v25, 2, v25\nv_sub_u32 v24, v24, v25')
    for kt in range(2):
        for r in range(4):
            a(f'v_cmp_le_i32 s[{MK + 8 * kt + 2 * r}:{MK + 8 * kt + 2 * r + 1}], {16 * kt + r}, v24')
    a(f'v_lshrrev_b32 {vHD}, 2, v0\nv_mul_u32_u24 {vHD}, 1152, {vHD}\nv_and_b32 v24, 3, v0\nv_lshlrev_b32 v24, 4, v24\nv_and_b32 v25, 32, v0\nv_xor_b32 v24, v24, v25\nv_add_u32 {vHD}, {vHD}, v24')
    bits(a, vHR, t0, [(0, 4, 6), (4, 2, 4)])
    a(f'v_and_b32 v24, 8, v0\nv_lshlrev_b32 v24, 2, v24\nv_xor_b32 {vHR}, {vHR}, v24')
    bits(a, vKM, t0, [(4, 2, 4), (2, 2, 7), (0, 1, 6)], KM)
    a(f'v_lshlrev_b32 {vA}, 4, v0')
    a(f's_mov_b32 {sC}, {CSC:#x}\ns_mov_b32 {sJ}, 0\ns_mov_b32 {sJA}, 0\ns_sub_u32 {sD}, 3, {sL}\ns_lshl_b32 {sW10}, {sW}, 10')
    a(f"""s_mul_i32 {sHS}, {sL}, {L.H2 - L.H1:#x}
    s_add_u32 {sHS}, {sHS}, {L.H1:#x}
    s_mul_i32 {sTMP}, {sPAR}, 36864
    s_add_u32 {sHS}, {sHS}, {sTMP}
    s_and_b32 {sT2}, {sW}, 1
    s_mul_i32 {sTMP}, {sT2}, 18432
    s_add_u32 {sHS}, {sHS}, {sTMP}
    s_lshl_b32 {sLBH}, {sT2}, 10
    s_lshl_b32 {sQO}, {sT2}, 12
    s_lshr_b32 {sT2}, {sW}, 1
    s_mul_i32 {sTMP}, {sT2}, 576
    s_add_u32 {sHS}, {sHS}, {sTMP}
    s_mul_i32 {sTMP}, {sT2}, 18432
    s_add_u32 {sLBH}, {sLBH}, {sTMP}
    s_lshl_b32 {sVO}, {sT2}, 12""")
    a(f"""s_lshl_b32 {sT2}, {sL}, 5
    s_add_u32 {sT2}, {sT2}, {sH}
    s_lshl_b32 {sTMP}, {sT2}, 6
    s_add_u32 {sTMP}, {sTMP}, {sPAR}
    s_lshl_b32 {sKV}, {sTMP}, 14
    s_add_u32 {sKV}, {sKV}, {L.KV:#x}
    s_lshl_b32 {sKVM}, {sTMP}, 12
    s_add_u32 {sKVM}, {sKVM}, {L.KVM:#x}
    s_add_u32 {sKVM}, {sKVM}, {sW10}
    s_mov_b32 {sARM}, {sKVM}
    s_lshl_b32 {sO}, {sTMP}, 13
    s_add_u32 {sO}, {sO}, {L.O:#x}
    s_lshl_b32 {sTMP}, {sT2}, 1
    s_add_u32 {sTMP}, {sTMP}, {sPAR}
    s_lshl_b32 {sFKV}, {sTMP}, 6
    s_add_u32 {sFKV}, {sFKV}, {sW}
    s_lshl_b32 {sFKV}, {sFKV}, 1
    s_add_u32 {sFKV}, {sFKV}, {L.FKV:#x}
    s_lshl_b32 {sTMP}, {sL}, 1
    s_add_u32 {sTMP}, {sTMP}, {sPAR}
    s_lshl_b32 {sTMP}, {sTMP}, 5
    s_add_u32 {sTMP}, {sTMP}, {sH}
    s_lshl_b32 {sFO}, {sTMP}, 5
    s_add_u32 {sFO}, {sFO}, {sW}
    s_lshl_b32 {sFO}, {sFO}, 2
    s_add_u32 {sFO}, {sFO}, {L.FO:#x}
    s_lshl_b32 {sFH}, {sPAR}, 7
    s_add_u32 {sFH}, {sFH}, {L.FH:#x}
    s_cmp_eq_u32 {sL}, 0
    s_cselect_b32 {sFH}, {L.MR - 128:#x}, {sFH}
    s_mov_b32 {sPW}, {PK}
    s_mov_b32 {sPR}, {PK}""")
    a(f's_add_u32 {sO}, {sO}, {sVO}\ns_lshr_b32 {sTMP}, {sQO}, 2\ns_add_u32 {sO}, {sO}, {sTMP}')
    a('s_barrier')
    LOOP, NOH, NOA, NOP_, NH2 = [a.lab(x) for x in ('ql', 'qnh', 'qna', 'qnp', 'qn2')]
    th, to = a.tok('h'), a.tok('o')
    def hdma():
        for i in range(9):
            a(f's_add_u32 m0, {sLBH}, {HB + i * 1984}')
            a(f'buffer_load_dwordx4 {vHD}, {WS}, {sHS} offen offset:{i * 64} sc1 lds', tok=th)
        a(f's_add_u32 {sHS}, {sHS}, {2 * 36864}')
    def flag(vt, val, so, short=False):
        a(f'v_mov_b32 v{vt}, {val}\ns_mov_b64 exec, 1\nbuffer_store_{"short" if short else "dword"} v{vt}, {vA}, {WS}, {so} offen sc1\ns_mov_b64 exec, -1')
    fhl = f'v_bfe_u32 v7, {vA}, 2, 7\nbuffer_load_dword v7, v7, {WS}, {sFH} offen sc1'
    a(fhl)
    a(f'{LOOP}:')
    a(f's_mov_b32 {sDM}, 0\ns_add_u32 {sNEED}, {sJ}, 1\nv_cmp_gt_u32 vcc, {sNEED}, v7')
    a(f's_cmp_ge_u32 {sJ}, 32\ns_cbranch_scc1 {NOH}\ns_cbranch_vccnz {NOH}')
    hdma()
    a(f's_mov_b32 {sDM}, 1\n{NOH}:')
    a(f's_cmp_lt_u32 {sJ}, {sD}\ns_cbranch_scc1 {NOA}w')
    a(f'buffer_load_dwordx4 v[8:11], {vA}, {WS}, {sKVM} offen sc1')
    a(f'v_add_u32 v4, {sPR}, {vA}\nv_add_u32 v5, {sQO}, v4')
    for k in range(4): a(f'ds_read_b128 {vr(24 + 4 * k, 4)}, v5 offset:{k * 1024}')
    for k in range(8): a(f'ds_read_b128 {vr(40 + 4 * k, 4)}, v4 offset:{8192 + k * 1024}')
    a(f'v_add_u32 v5, {sVO}, v4\ns_add_u32 {sTMP}, {sW10}, {KM}\nv_add_u32 v6, {sTMP}, {vA}')
    a(f's_lshr_b32 {sTMP}, {sVO}, 2\ns_add_u32 {sTMP}, {sTMP}, {KM + 2048}\nv_lshrrev_b32 v7, 1, {vA}\nv_add_u32 v7, {sTMP}, v7')
    for kt in range(2):
        for k in range(4):
            a(f'{MF32} {vr(72 + 4 * kt, 4)}, {vr(40 + 16 * kt + 4 * k, 4)}, {vr(24 + 4 * k, 4)}, {"0" if k == 0 else vr(72 + 4 * kt, 4)}')
    for k in range(4): a(f'ds_read_b128 {vr(56 + 4 * k, 4)}, v5 offset:{16384 + k * 1024}')
    a('v_mov_b32 v44, 0xff800000')
    for r in range(4): a(f'v_mov_b32 v{48 + r}, 0x3f803f80')
    for i in range(8): a(f'v_cndmask_b32 v{72 + i}, v44, v{72 + i}, s[{MK + 2 * i}:{MK + 2 * i + 1}]')
    a('v_max3_f32 v45, v72, v73, v74\nv_max3_f32 v45, v45, v75, v76\nv_max3_f32 v45, v45, v77, v78\nv_max_f32 v45, v45, v79')
    lp, dn = a.lab('mp'), a.lab('md')
    a(f"""{lp}:
    v_max3_u32 v46, v8, v9, v10
    v_max_u32 v46, v46, v11
    v_cmp_eq_u32 vcc, -1, v46
    s_cbranch_vccz {dn}
    buffer_load_dwordx4 v[8:11], {vA}, {WS}, {sKVM} offen sc1
    s_sub_u32 {sBUD}, {sBUD}, 1
    s_cbranch_scc0 {lp}
    s_mov_b32 {sBUD}, 0
    {dn}:
    ds_write_b128 v6, v[8:11]
    s_waitcnt lgkmcnt(0)
    s_barrier""")
    for k in range(4): a(f'ds_read_b128 {vr(8 + 4 * k, 4)}, {vKM} offset:{k * 512}')
    a('ds_read_b64 v[4:5], v7\nds_read_b64 v[6:7], v7 offset:512')
    for k in range(4):
        a(f'{MF32} v[40:43], {vr(8 + 4 * k, 4)}, {vr(24 + 4 * k, 4)}, {"0" if k == 0 else "v[40:43]"}')
    a('v_max3_f32 v45, v45, v40, v41')
    xreduce(a, 'v_max_f32', 'v45', 'v46')
    a(f'v_mul_f32 v45, {sC}, v45')
    sv = list(range(72, 80)) + [40, 41]
    for r in sv: a(f'v_fma_f32 v{r}, v{r}, {sC}, -v45')
    for r in sv: a(f'v_exp_f32 v{r}, v{r}')
    for i in range(4): a(f'v_cvt_pk_bf16_f32 v{8 + i}, v{72 + 2 * i}, v{73 + 2 * i}')
    a('v_cvt_pk_bf16_f32 v12, v40, v41\nv_mov_b32 v13, 0\nv_mov_b32 v14, 0\nv_cvt_pk_bf16_f32 v15, v40, v41')
    a(f'{MF32} v[52:55], v[48:51], v[8:11], 0')
    for e in range(4): a(f'{MF32} {vr(24 + 4 * e, 4)}, {vr(56 + 4 * e, 4)}, v[8:11], 0')
    a(f'{MF16} v[52:55], v[48:49], v[12:13], v[52:55]')
    for e in range(4): a(f'{MF16} {vr(24 + 4 * e, 4)}, {vr(4 + 2 * (e >> 1), 2)}, {vr(12 + 2 * (e & 1), 2)}, {vr(24 + 4 * e, 4)}')
    a(f's_add_u32 {sJA}, {sJA}, 1\ns_add_u32 {sKVM}, {sKVM}, 8192')
    a(f's_add_u32 {sPR}, {sPR}, {PKS}\ns_cmp_eq_u32 {sPR}, {PK + 3 * PKS}\ns_cselect_b32 {sPR}, {PK}, {sPR}')
    a('v_rcp_f32 v52, v52')
    for r in range(0, 16, 2): a(f'v_pk_mul_f32 {vr(24 + r, 2)}, {vr(24 + r, 2)}, v[52:53] op_sel_hi:[1,0]')
    for r in range(8): a(f'v_cvt_pk_bf16_f32 v{24 + r}, v{24 + 2 * r}, v{25 + 2 * r}')
    a(f'buffer_store_dwordx4 v[24:27], {vA}, {WS}, {sO} offen sc1\nbuffer_store_dwordx4 v[28:31], {vA}, {WS}, {sO} offen offset:2048 sc1', tok=to)
    a(f's_add_u32 {sO}, {sO}, 16384')
    rts(a, 8, sJA, 1)
    a(f'{NOA}:')
    a(f's_cmp_eq_u32 {sDM}, 1\ns_cbranch_scc1 {NH2}')
    a('s_waitcnt vmcnt(0)')
    flag(8, sJA, sFO)
    a(f's_cmp_ge_u32 {sJ}, 32\ns_cbranch_scc1 {NOP_}')
    a(f'v_bfe_u32 v9, {vA}, 2, 7')
    poll_flag(a, 'v8', 'v9', sFH, sNEED)
    hdma()
    rts(a, 8, sJ, 70)
    a(f's_waitcnt vmcnt(0)\n{NH2}:')
    rts(a, 8, sJ, 71)
    tkv = a.tok('kv')
    a('v_mov_b64 v[4:5], -1\nv_mov_b64 v[6:7], -1')
    a.wait(th)
    a('s_barrier')
    AK, AV, AQ_, HR = 8, 24, 40, 56
    hs = lambda k, rt: vr(HR + 8 * (k % 3) + 4 * rt, 4)
    rdH = lambda k, rt: f'ds_read_b128 {hs(k, rt)}, {vHR} offset:{HB + ((k % 18) * 2 + rt) * 1024}'
    st = Stream(a)
    st.add(-1, 'D', *[rdH(k, rt) for k in range(3) for rt in range(2)])
    for k in range(18):
        for rt in range(2):
            for T in range(2):
                d = vr(AK + 8 * rt + 4 * T, 4)
                st.mf(f'{MF32} {d}, {wf("k", T, k)}, {hs(k, rt)}, {"0" if k == 0 else d}')
            for T in range(2):
                d = vr(AV + 8 * T + 4 * rt, 4)
                p = st.mf(f'{MF32} {d}, {hs(k, rt)}, {wf("v", T, k)}, {"0" if k == 0 else d}')
            st.add(p, 'D', rdH(k + 3, rt))
    for k in range(18):
        for rt in range(2):
            for T in range(2):
                d = vr(AQ_ + 8 * rt + 4 * T, 4)
                p = st.mf(f'{MF32} {d}, {wf("q", T, k)}, {hs(k, rt)}, {"0" if k == 0 else d}')
            if k + 3 < 18: st.add(p, 'D', rdH(k + 3, rt))
    st.add(44, 'V', f'v_mov_b32 v{AQ_}, {sJA}')
    st.add(45, 'X', lambda: a.wait(to), 's_mov_b64 exec, 1', f'buffer_store_dword v{AQ_}, {vA}, {WS}, {sFO} offen sc1', 's_mov_b64 exec, -1')
    st.add(49, 'D', f'buffer_store_dwordx4 v[4:7], {vA}, {WS}, {sARM} offen sc1')
    st.add(53, 'S', f's_add_u32 {sARM}, {sARM}, 8192')
    st.add(136, 'S', f's_add_u32 {sT2}, {sW10}, {sPW}'); st.add(137, 'V', f'v_add_u32 v4, {sT2}, {vA}')
    st.add(138, 'S', f's_add_u32 {sT2}, {sT2}, {sW10}'); st.add(140, 'V', f'v_add_u32 v5, {sT2}, {vA}')
    st.add(141, 'S', f's_add_u32 {sT2}, {sW10}, {sKV}'); st.add(142, 'S', f's_add_u32 {sB0}, {sT2}, 4096')
    st.add(144, 'S', f's_add_u32 {sTMP}, {sB0}, {sW10}'); st.add(146, 'S', f's_add_u32 {sTMP}, {sTMP}, 4096')
    pos = 146
    for b in range(4):
        base = AK + 8 * b
        for r in range(4): st.add(pos + (r >> 1) * 2, 'V', f'v_cvt_pk_bf16_f32 v{base + r}, v{base + 2 * r}, v{base + 2 * r + 1}')
        if b < 2:
            st.add(pos + 4, 'D', lambda base=base, b=b: a(f'buffer_store_dwordx4 {vr(base, 4)}, {vA}, {WS}, {[sT2, sB0][b]} offen sc1', tok=tkv))
            st.add(pos + 24, 'D', f'ds_write_b128 v4, {vr(base, 4)} offset:{8192 + b * 4096}')
        else:
            st.add(pos + 4, 'D', lambda base=base, b=b: a(f'buffer_store_dwordx4 {vr(base, 4)}, {vA}, {WS}, {sTMP} offen offset:{(b - 2) * 1024} sc1', tok=tkv))
            st.add(pos + 24, 'D', f'ds_write_b128 v5, {vr(base, 4)} offset:{16384 + (b - 2) * 1024}')
        pos += 6
    st.add(210, 'S', f's_add_u32 {sT2}, {sJ}, 1')
    st.add(206, 'X', fhl)
    st.emit()
    a.wait(tkv)
    flag(6, sT2, sFKV, True)
    for b in range(2):
        base = AQ_ + 8 * b
        for r in range(4): a(f'v_cvt_pk_bf16_f32 v{base + r}, v{base + 2 * r}, v{base + 2 * r + 1}')
        a(f'ds_write_b128 v4, {vr(base, 4)} offset:{b * 4096}')
    rts(a, 8, sJ, 2)
    a(f's_add_u32 {sKV}, {sKV}, 32768')
    a(f's_add_u32 {sPW}, {sPW}, {PKS}\ns_cmp_eq_u32 {sPW}, {PK + 3 * PKS}\ns_cselect_b32 {sPW}, {PK}, {sPW}')
    a(f'{NOP_}:\ns_waitcnt lgkmcnt(0)\ns_barrier')
    a(f's_add_u32 {sJ}, {sJ}, 1\ns_cmp_lt_u32 {sJA}, 32\ns_cbranch_scc1 {LOOP}')
    a(f's_endpgm\n{NOA}w:\ns_waitcnt vmcnt(0)\ns_branch {NOA}')

def gen_op(a):
    vA, vST, TA, vB = 'v0', 'v1', 'v2', 'v3'
    sL, sKG, sLB, sTMP, sB0, sCG = 's11', 's12', 's13', 's14', 's15', 's16'
    sS, sO, sFO, sFP, sPP, sT2, sBUF, sPAR, sT3, sT4 = ['s%d' % i for i in range(52, 62)]
    a('op:')
    a(f"""s_sub_u32 {sPAR}, {sX}, 6
    s_cmp_ge_u32 {sT}, 12
    s_cselect_b32 {sL}, 1, 0
    s_mul_i32 {sTMP}, {sL}, 12
    s_sub_u32 {sT2}, {sT}, {sTMP}
    s_mul_i32 {sKG}, {sT2}, 43
    s_lshr_b32 {sKG}, {sKG}, 7
    s_mul_i32 {sTMP}, {sKG}, 3
    s_sub_u32 {sCG}, {sT2}, {sTMP}
    s_mul_i32 {sLB}, {sW}, 36864""")
    vTR, vo1, t0 = 'v20', 'v21', 'v24'
    mk_vTR(a, vTR, t0, sLB)
    bits(a, vo1, t0, [(4, 1, 4), (5, 1, 2), (2, 2, 0)])
    a(f'v_mul_u32_u24 {vo1}, 1152, {vo1}\nv_and_b32 {t0}, 3, v0\nv_lshl_add_u32 {vo1}, {t0}, 4, {vo1}')
    a(f's_mul_i32 {sB0}, {sKG}, {1024 * 1152}\ns_mul_i32 {sTMP}, {sCG}, 384\ns_add_u32 {sB0}, {sB0}, {sTMP}\ns_mul_i32 {sTMP}, {sW}, 96\ns_add_u32 {sB0}, {sB0}, {sTMP}')
    pool = [('a', 8 * i) for i in range(32)] + [('v', 128 + 8 * i) for i in range(16)]
    W = {}; units = []
    for k64 in range(16):
        for pr in range(2):
            d = []
            for T in (2 * pr, 2 * pr + 1):
                if T == 3: d.append(None); continue
                x = pool.pop(0); d.append(x)
                for hh in range(2): W[(T, 2 * k64 + hh)] = vr(x[1] + 4 * hh, 4, x[0])
            units.append((WO, vo1, sB0, [(64 * k64 + 32 * (q >> 1) + 8 * (q & 1)) * 1152 + 64 * pr for q in range(4)], d[0], d[1]))
    load_units(a, units, vTR, None, sLB, sTMP, None)
    rts(a, 30, None, 1)
    a(f'v_lshrrev_b32 {vST}, 4, v0\nv_mul_u32_u24 {vST}, 3072, {vST}\nv_and_b32 v24, 15, v0\nv_lshl_add_u32 {vST}, v24, 2, {vST}')
    bits(a, TA, t0, [(0, 2, 2), (2, 1, 9)])
    a(f'v_lshlrev_b32 {vA}, 4, v0')
    a(f"""s_mov_b32 {sS}, 0
    s_lshl_b32 {sT2}, {sKG}, 3
    s_add_u32 {sT2}, {sT2}, {sW}
    s_lshl_b32 {sTMP}, {sL}, 5
    s_add_u32 {sTMP}, {sTMP}, {sT2}
    s_lshl_b32 {sTMP}, {sTMP}, 6
    s_add_u32 {sTMP}, {sTMP}, {sPAR}
    s_lshl_b32 {sO}, {sTMP}, 13
    s_add_u32 {sO}, {sO}, {L.O:#x}
    s_lshl_b32 {sTMP}, {sL}, 1
    s_add_u32 {sTMP}, {sTMP}, {sPAR}
    s_lshl_b32 {sTMP}, {sTMP}, 5
    s_add_u32 {sTMP}, {sTMP}, {sT2}
    s_lshl_b32 {sFO}, {sTMP}, 7
    s_add_u32 {sFO}, {sFO}, {L.FO:#x}
    s_lshl_b32 {sFP}, {sT}, 2
    s_add_u32 {sFP}, {sFP}, {sW}
    s_lshl_b32 {sFP}, {sFP}, 1
    s_lshl_b32 {sTMP}, {sL}, 5
    s_add_u32 {sFP}, {sFP}, {sTMP}
    s_lshl_b32 {sTMP}, {sPAR}, 8
    s_add_u32 {sFP}, {sFP}, {sTMP}
    s_add_u32 {sFP}, {sFP}, {L.FP:#x}
    s_mul_i32 {sPP}, {sPAR}, 24
    s_add_u32 {sPP}, {sPP}, {sT}
    s_mul_i32 {sPP}, {sPP}, {L.PP_C:#x}
    s_mul_i32 {sTMP}, {sW}, 192
    s_add_u32 {sPP}, {sPP}, {sTMP}
    s_add_u32 {sPP}, {sPP}, {L.PP:#x}
    s_mov_b32 {sBUF}, 0
    s_barrier""")
    LOOP = a.lab('ol')
    a(f'{LOOP}:')
    a(f's_add_u32 {sS}, {sS}, 1\ns_lshl_b32 {sT2}, {sW}, 13\ns_add_u32 {sT2}, {sT2}, {sBUF}\ns_add_u32 {sTMP}, {sO}, 4096\ns_add_u32 {sT3}, {sO}, {4 * 64 * 8192:#x}\ns_add_u32 {sT4}, {sT3}, 4096')
    a(f'v_add_u32 {vB}, {sBUF}, {vA}')
    poll_flag(a, 'v8', TA, sFO, sS)
    t1, t2 = a.tok('o'), a.tok('o')
    for i in range(16):
        if i % 4 == 0: a(f's_add_u32 m0, {sT2}, {(i // 8) * 32768 + ((i // 4) & 1) * 4096}')
        a(f'buffer_load_dwordx4 {vA}, {WS}, {[sO, sTMP, sT3, sT4][i // 4]} offen offset:{(i % 4) * 1024} sc1 lds', tok=t1 if i < 8 else t2)
    rts(a, 8, sS, 0)
    a.wait(t1)
    a('s_barrier')
    AC, HR = 8, 32
    hs = lambda k, rt: vr(HR + 8 * (k % 3) + 4 * rt, 4)
    rd = lambda k, rt: f'ds_read_b128 {hs(k, rt)}, {vB} offset:{(k * 2 + rt) * 1024}'
    st = Stream(a)
    st.add(-1, 'D', *[rd(k, rt) for k in range(3) for rt in range(2)])
    for k in range(32):
        for rt in range(2):
            for T in range(3):
                d = vr(AC + 12 * rt + 4 * T, 4)
                p = st.mf(f'{MF32} {d}, {hs(k, rt)}, {W[(T, k)]}, {"0" if k == 0 else d}')
            if k + 3 < 32: st.add(p, 'D', rd(k + 3, rt))
    st.add(13 * 6, 'X', lambda: a.wait(t2), 's_barrier')
    st.add(100, 'S', f's_add_u32 {sTMP}, {sPP}, 12288')
    st.emit()
    for rt in range(2):
        for T in range(3):
            for r in range(4):
                a(f'buffer_store_dword v{AC + 12 * rt + 4 * T + r}, {vST}, {WS}, {[sPP, sTMP][rt]} offen offset:{r * 768 + T * 64}')
    a(f'v_mov_b32 v4, {sS}')
    a(f's_add_u32 {sO}, {sO}, 16384\ns_add_u32 {sPP}, {sPP}, 24576\ns_xor_b32 {sBUF}, {sBUF}, 65536')
    a(f's_waitcnt vmcnt(0)\ns_mov_b64 exec, 1\nbuffer_store_short v4, {vA}, {WS}, {sFP} offen\ns_mov_b64 exec, -1')
    rts(a, 8, sS, 1)
    a(f's_cmp_lt_u32 {sS}, 32\ns_cbranch_scc1 {LOOP}')
    a('s_endpgm')

def wsum2(a, x, y, t, u):
    for r in (8, 4, 2, 1):
        a(f'v_add_f32_dpp {x}, {x}, {x} row_ror:{r} {DPPF}\nv_add_f32_dpp {y}, {y}, {y} row_ror:{r} {DPPF}')
    for sw in ('v_permlane16_swap_b32', 'v_permlane32_swap_b32'):
        a(f'v_mov_b32 {t}, {x}\nv_mov_b32 {u}, {y}\n{sw} {t}, {x}\n{sw} {u}, {y}\nv_add_f32 {x}, {x}, {t}\nv_add_f32 {y}, {y}, {u}')

def pack(a, pk, X):
    for i in range(6): a(f'v_cvt_pk_bf16_f32 v{pk + i}, v{X + 2 * i}, v{X + 2 * i + 1}')
def unpack(a, dst, src, n):
    for i in range(n):
        a(f'v_lshlrev_b32 v{dst + 2 * i}, 16, v{src + i}\nv_and_b32 v{dst + 2 * i + 1}, 0xffff0000, v{src + i}')
def rnd1(a, x):
    a(f'v_cvt_pk_bf16_f32 {x}, {x}, {x}\nv_and_b32 {x}, 0xffff0000, {x}')
def pk(a, op, d, x, y, z=None, n=6):
    for i in range(n):
        ops, hi = [], []
        for o in (x, y, z):
            if o is None: continue
            if isinstance(o, tuple): ops.append(vr(o[1], 2)); hi.append(0)
            else: ops.append(vr(o + 2 * i, 2)); hi.append(1)
        a(f'v_pk_{op}_f32 {vr(d + 2 * i, 2)}, ' + ', '.join(ops) + ('' if all(hi) else ' op_sel_hi:[' + ','.join(map(str, hi)) + ']'))

def ln_stats(a, X, Q, T, live, sc):
    m, r, t, u = f'v{T}', f'v{T + 2}', f'v{T + 4}', f'v{T + 5}'
    a(f'v_readfirstlane_b32 {sc}, v{X}\nv_sub_f32 {m}, 0, {sc}' if False else f'v_readfirstlane_b32 {sc}, v{X}\ns_xor_b32 {sc}, {sc}, 0x80000000\nv_mov_b32 {m}, {sc}')
    pk(a, 'add', Q, X, ('b', T))
    a(f'v_pk_mul_f32 {vr(T + 2, 2)}, {vr(Q, 2)}, {vr(Q, 2)}\nv_pk_add_f32 {vr(T, 2)}, {vr(Q, 2)}, {vr(Q + 2, 2)}')
    for i in range(1, 6):
        a(f'v_pk_fma_f32 {vr(T + 2, 2)}, {vr(Q + 2 * i, 2)}, {vr(Q + 2 * i, 2)}, {vr(T + 2, 2)}')
        if i > 1: a(f'v_pk_add_f32 {vr(T, 2)}, {vr(T, 2)}, {vr(Q + 2 * i, 2)}')
    a(f'v_add_f32 {m}, {m}, v{T + 1}\nv_add_f32 {r}, {r}, v{T + 3}\nv_cndmask_b32 {m}, 0, {m}, {live}\nv_cndmask_b32 {r}, 0, {r}, {live}')
    wsum2(a, m, r, t, u)
    a(f'v_mul_f32 {m}, {fbits(1 / 576):#x}, {m}\nv_mul_f32 {r}, {fbits(1 / 576):#x}, {r}\nv_fma_f32 {r}, -{m}, {m}, {r}\nv_max_f32 {r}, 0, {r}\nv_sub_f32 {m}, {sc}, {m}')
    rnd1(a, r); rnd1(a, m)
    a(f'v_add_f32 {r}, {fbits(1e-5):#x}, {r}')
    rnd1(a, r)
    a(f'v_sqrt_f32 {r}, {r}')
    rnd1(a, r)
    a(f'v_rcp_f32 {r}, {r}')

def a_layer(a, X, YP, live, sc, store_x, store_h):
    Q, PKR, T, YF = X + 12, X + 24, X + 30, X + 36
    unpack(a, YF, YP, 6)
    ln_stats(a, X, Q, T, live, sc)
    pk(a, 'add', Q, X, ('b', T))
    pk(a, 'mul', YF, YF, ('b', T + 2))
    pk(a, 'fma', X, Q, YF, X)
    pack(a, YF, X); unpack(a, X, YF, 6)
    store_x(YF)
    ln_stats(a, X, Q, T, live, sc)
    pk(a, 'add', Q, X, ('b', T))
    pack(a, PKR, Q); unpack(a, Q, PKR, 6)
    pk(a, 'mul', Q, Q, ('b', T + 2))
    pack(a, PKR, Q)
    store_h(PKR)

def lane48(a, v16, v8):
    a(f"""s_mov_b32 s24, -1
    s_mov_b32 s25, 0xffff
    v_lshlrev_b32 {v16}, 4, v0
    v_lshlrev_b32 {v8}, 3, v0
    v_mov_b32 v4, 0x80000000
    v_cndmask_b32 {v16}, v4, {v16}, s[24:25]
    v_cndmask_b32 {v8}, v4, {v8}, s[24:25]""")

def gen_red(a):
    v16, v8, vF = 'v1', 'v2', 'v3'
    sPAR, sROW, sTMP = 's11', 's12', 's14'
    sJ0, sJ1, sPP, sFP, sRO, sT2, sFH, sT3, sJ = ['s%d' % i for i in range(52, 61)]
    a('red:')
    a(f"""s_sub_u32 {sPAR}, {sX}, 6
    s_sub_u32 {sROW}, {sT}, 24
    s_lshl_b32 {sROW}, {sROW}, 2
    s_add_u32 {sROW}, {sROW}, {sW}
    s_mov_b32 {sJ0}, 0
    s_mov_b32 {sJ1}, 0
    s_mul_i32 {sPP}, {sPAR}, {24 * L.PP_C:#x}
    s_mul_i32 {sTMP}, {sROW}, 768
    s_add_u32 {sPP}, {sPP}, {sTMP}
    s_add_u32 {sPP}, {sPP}, {L.PP:#x}
    s_lshl_b32 {sFP}, {sPAR}, 8
    s_add_u32 {sFP}, {sFP}, {L.FP:#x}
    s_lshl_b32 {sTMP}, {sPAR}, 5
    s_add_u32 {sTMP}, {sTMP}, {sROW}
    s_mul_i32 {sRO}, {sTMP}, 1152
    s_lshl_b32 {sFH}, {sTMP}, 2
    s_add_u32 {sFH}, {sFH}, {L.FH:#x}""")
    lane48(a, v16, v8)
    a(f'v_lshlrev_b32 {vF}, 1, v0')
    LOOP, J0, J1, END = a.lab('rl'), a.lab('r0'), a.lab('r1'), a.lab('re')
    a(f"""{LOOP}:
    s_add_u32 {sTMP}, {sJ0}, {sJ1}
    s_cmp_ge_u32 {sTMP}, 64
    s_cbranch_scc1 {END}
    buffer_load_ushort v4, {vF}, {WS}, {sFP} offen sc1
    buffer_load_ushort v5, {vF}, {WS}, {sFP} offen offset:128 sc1
    v_cmp_ge_u32 vcc, {sJ0}, v4
    s_and_b64 vcc, vcc, s[24:25]
    s_cbranch_vccz {J0}
    v_cmp_ge_u32 vcc, {sJ1}, v5
    s_and_b64 vcc, vcc, s[24:25]
    s_cbranch_vccz {J1}
    s_sub_u32 {sBUD}, {sBUD}, 1
    s_cbranch_scc0 {LOOP}
    {END}:
    s_endpgm""")
    PB, X = 100, 20
    def front(l, sj):
        rts(a, 8, sj, 2 + 64 * l)
        a(f's_mul_i32 {sT3}, {sj}, 24576\ns_add_u32 {sT3}, {sT3}, {sPP}\ns_mul_i32 {sJ}, {sj}, {2 * 36864}\ns_add_u32 {sJ}, {sJ}, {sRO}')
        for kg in range(4):
            for cg in range(3):
                a(f's_add_u32 {sTMP}, {sT3}, {(12 * l + kg * 3 + cg) * L.PP_C:#x}')
                a(f'buffer_load_dwordx4 {vr(PB + 12 * kg + 4 * cg, 4)}, {v16}, {WS}, {sTMP} offen sc1')
        a(f's_add_u32 {sTMP}, {sJ}, {[L.X1, L.X2][l]:#x}')
        for i in range(3): a(f'buffer_load_dwordx2 {vr(4 + 2 * i, 2)}, {v8}, {WS}, {sTMP} offen offset:{384 * i} sc1')
        if l == 0:
            a(f's_add_u32 {sT2}, {sJ}, {L.Y:#x}')
            for i in range(3): a(f'buffer_load_dwordx2 {vr(10 + 2 * i, 2)}, {v8}, {WS}, {sT2} offen offset:{384 * i} sc1')
        a(f's_add_u32 {sj}, {sj}, 1')
        pk(a, 'add', PB, PB, PB + 12); pk(a, 'add', PB + 24, PB + 24, PB + 36); pk(a, 'add', PB, PB, PB + 24)
        pack(a, PB + 12, PB); unpack(a, PB, PB + 12, 6)
        unpack(a, X, 4, 6)
        pk(a, 'add', X, X, PB)
        pack(a, 4, X)
    a(f'{J0}:')
    front(0, sJ0)
    unpack(a, X, 4, 6)
    def st(base):
        def f(r):
            a(f's_add_u32 {sTMP}, {sJ}, {base:#x}')
            for i in range(3): a(f'buffer_store_dwordx2 {vr(r + 2 * i, 2)}, {v8}, {WS}, {sTMP} offen offset:{384 * i} sc1')
        return f
    a_layer(a, X, 10, 's[24:25]', sT2, st(L.X2), st(L.H2))
    a(f'v_mov_b32 v4, {sJ0}\ns_waitcnt vmcnt(0)\ns_mov_b64 exec, 1\nbuffer_store_dword v4, {vF}, {WS}, {sFH} offen sc1\ns_mov_b64 exec, -1')
    rts(a, 8, sJ0, 1)
    a(f's_branch {LOOP}')
    a(f'{J1}:')
    front(1, sJ1)
    for i in range(3): a(f'buffer_store_dwordx2 {vr(4 + 2 * i, 2)}, {v8}, {OUT}, {sJ} offen offset:{384 * i}')
    rts(a, 8, sJ1, 65)
    a(f's_branch {LOOP}')

def gen_mega(a):
    a('.p2align 8\nmega_kernel:')
    a('s_cmp_ge_u32 s2, 256\ns_cbranch_scc1 .mega_end')
    a('s_load_dwordx16 s[16:31], s[0:1], 64')
    a(f'v_lshrrev_b32 v1, 6, v0\nv_and_b32 v0, 63, v0\nv_readfirstlane_b32 {sW}, v1')
    a(f's_getreg_b32 {sX}, hwreg(HW_REG_XCC_ID)\ns_and_b32 {sX}, {sX}, 7\ns_mov_b32 {sBUD}, 200000')
    a('s_waitcnt lgkmcnt(0)')
    srd(a, 4, 30, L.WS_BYTES)
    for d, b in ((32, 16), (36, 18), (40, 20), (44, 22)): srd(a, d, b, 4718592)
    srd(a, 48, 26, 2359296)
    a(f'v_mov_b32 v4, 0\ns_cmp_lg_u32 {sW}, 0\ns_cbranch_scc1 .tk')
    a(f's_lshl_b32 s11, {sX}, 5\nv_mov_b32 v1, s11\nv_mov_b32 v2, 1\ns_mov_b64 exec, 1')
    a('global_atomic_add v3, v1, v2, s[28:29] sc0 sc1\nds_write_b32 v4, v3\ns_mov_b64 exec, -1')
    a('.tk:\ns_waitcnt lgkmcnt(0)\ns_barrier\nds_read_b32 v3, v4')
    a(f'v_readfirstlane_b32 {sT}, v3\ns_barrier')
    a(f's_cmp_ge_u32 {sT}, 32\ns_cbranch_scc1 .mega_end')
    e = '.mega_end'
    rts(a, 8, None, 0)
    a(f's_cmp_lt_u32 {sX}, 2\ns_cbranch_scc1 {"chain" if "c" in ROLES else e}')
    a(f's_cmp_lt_u32 {sX}, 6\ns_cbranch_scc1 {"qkv" if "q" in ROLES else e}')
    a(f's_cmp_lt_u32 {sT}, 24\ns_cbranch_scc1 {"op" if "o" in ROLES else e}')
    a(f's_branch {"red" if "r" in ROLES else e}')
    a('.mega_end:\ns_endpgm')
    if 'c' in ROLES: gen_chain(a)
    if 'q' in ROLES: gen_qkv(a)
    if 'o' in ROLES: gen_op(a)
    if 'r' in ROLES: gen_red(a)

MF3232 = 'v_mfma_f32_32x32x16_bf16'
CONV_LDS = 32768 + 4 * 17408
def gen_conv(a):
    KVR = 0; HC = 32768; EX = HC
    a('.p2align 8\nconv_kernel:')
    a('s_cmp_ge_u32 s2, 174\ns_cbranch_scc1 .conv_end')
    a('s_load_dwordx8 s[16:23], s[0:1], 8\ns_load_dwordx2 s[24:25], s[0:1], 40\ns_load_dwordx2 s[30:31], s[0:1], 120')
    a(f'v_lshrrev_b32 v1, 6, v0\nv_readfirstlane_b32 {sW}, v1')
    a('s_waitcnt lgkmcnt(0)')
    srd(a, 4, 30, L.WS_BYTES)
    a('s_cmp_lt_u32 s2, 144\ns_cbranch_scc1 .conv_go')
    a('s_sub_u32 s8, s2, 144\ns_cmp_eq_u32 s8, 0\ns_cselect_b32 s9, 0, -1\ns_lshl_b32 s8, s8, 16\nv_lshlrev_b32 v1, 4, v0')
    for r in range(4): a(f'v_mov_b32 v{4 + r}, s9')
    a('v_and_b32 v2, 7, v0\nv_cmp_eq_u32 vcc, 0, v2\nv_cndmask_b32 v8, -1, v4, vcc\nv_mov_b32 v9, v8\nv_mov_b32 v10, -1\nv_mov_b32 v11, -1')
    for i in range(16):
        a(f'buffer_store_dwordx4 {"v[8:11]" if i < 4 else "v[4:7]"}, v1, {WS}, s8 offen\ns_add_u32 s8, s8, 4096')
    a('.conv_end:\ns_endpgm\n.conv_go:')
    srd(a, 32, 16, 2359296)
    srd(a, 36, 18, 2359296)
    a(f's_lshl_b32 s8, s2, 2\ns_add_u32 s8, s8, {sW}\ns_lshl_b32 s9, s8, 12\ns_add_u32 s22, s22, s9\ns_addc_u32 s23, s23, 0')
    srd(a, 40, 22, 4096)
    a('s_lshl_b32 s9, s2, 5\ns_add_u32 s20, s20, s9\ns_addc_u32 s21, s21, 0\ns_load_dwordx8 s[52:59], s[20:21], 0')
    a('s_lshr_b32 s9, s8, 1\ns_lshl_b32 s9, s9, 2\ns_add_u32 s24, s24, s9\ns_addc_u32 s25, s25, 0\ns_load_dword s60, s[24:25], 0')
    a('v_mul_u32_u24 v2, 9216, v0\ns_lshl_b32 s9, s2, 3\nv_add_u32 v2, s9, v2\nv_subrev_u32 v1, 3456, v2\nv_add_u32 v3, 4608, v2')
    KB, VB = 10, 32
    for r in range(11):
        vo, im = ('v1', r * 1152) if r < 3 else (('v2', (r - 3) * 1152) if r < 7 else ('v3', (r - 7) * 1152))
        a(f'buffer_load_dwordx2 {vr(KB + 2 * r, 2)}, {vo}, s[32:35], 0 offen offset:{im}')
    for r in range(8):
        vo, im = ('v2', r * 1152) if r < 4 else ('v3', (r - 4) * 1152)
        a(f'buffer_load_dwordx2 {vr(VB + 2 * r, 2)}, {vo}, s[36:39], 0 offen offset:{im}')
    a(f'v_and_b32 v4, 63, v0\nv_lshlrev_b32 v5, 4, v4\ns_mul_i32 s11, {sW}, 17408\ns_add_u32 s11, s11, {HC}')
    th = a.tok('h')
    for i in range(17):
        c0 = (64 * i) // 260; thr = 260 * (c0 + 1) - 64 * i
        a(f'v_add_u32 v6, {(1024 * i - 62 - 4158 * c0) & 0xffffffff:#x}, v5')
        if thr < 64:
            a(f'v_subrev_u32 v7, 4158, v6\nv_cmp_le_u32 vcc, {thr}, v4\nv_cndmask_b32 v6, v6, v7, vcc')
        a(f's_add_u32 m0, s11, {i * 1024}')
        a('buffer_load_dwordx4 v6, s[40:43], 0 offen lds', tok=th)
    a('v_bfe_u32 v6, v4, 3, 2\nv_and_b32 v7, 7, v4\nv_add_u32 v8, v6, v7\nv_subrev_u32 v8, 7, v8\nv_lshlrev_b32 v8, 1, v8')
    a('buffer_load_ushort v9, v8, s[40:43], 0 offen')
    a('v_mul_u32_u24 v6, 4160, v6\nv_lshl_add_u32 v6, v7, 1, v6\nv_add_u32 v8, s11, v6')
    for r in range(4): a(f'v_mov_b32 v{48 + r}, 0')
    a(f's_lshl_b32 s12, {sW}, 13\nv_add_u32 v6, s12, v5')
    for i in range(3): a(f'ds_write_b128 v6, v[48:51] offset:{KVR + 5120 + 1024 * i}')
    a('s_waitcnt lgkmcnt(0)')
    for i in range(8): a(f's_lshl_b32 s{64 + 2 * i}, s{52 + i}, 16\ns_and_b32 s{65 + 2 * i}, s{52 + i}, 0xffff0000')
    a('s_lshl_b32 s61, s60, 16\ns_and_b32 s60, s60, 0xffff0000\ns_bitcmp1_b32 s8, 0\ns_cselect_b32 s60, s60, s61')
    a('v_sub_u32 v6, 255, v0\nv_lshrrev_b32 v7, 2, v6\nv_mul_u32_u24 v7, 80, v7\nv_and_b32 v6, 3, v6\nv_lshl_add_u32 v7, v6, 4, v7')
    KF, AC = 52, 64
    for ch in range(4):
        un = (lambda d, s: f'v_lshlrev_b32 v{d}, 16, v{s}') if ch % 2 == 0 else (lambda d, s: f'v_and_b32 v{d}, 0xffff0000, v{s}')
        for r in range(11): a(un(KF + r, KB + 2 * r + ch // 2))
        for r in range(8):
            a(f'v_mul_f32 v{AC + r}, s{64 + 4 * ch + 3}, v{KF + r}')
            for j in range(1, 4): a(f'v_fmac_f32 v{AC + r}, s{64 + 4 * ch + 3 - j}, v{KF + r + j}')
        for r in range(8):
            a(un(KF + r, VB + 2 * r + ch // 2))
            a(f'v_mul_f32 v{AC + r}, v{AC + r}, v{KF + r}')
        for i in range(4): a(f'v_cvt_pk_bf16_f32 v{72 + i}, v{AC + 7 - 2 * i}, v{AC + 6 - 2 * i}')
        a(f'ds_write_b128 v7, v[72:75] offset:{KVR + ch * 8192}')
    a.wait(th)
    a('ds_write_b16 v8, v9 offset:48')
    a('v_and_b32 v6, 3, v4\nv_mul_u32_u24 v1, 4160, v6\nv_bfe_u32 v6, v4, 2, 3\nv_lshl_add_u32 v1, v6, 3, v1\nv_lshrrev_b32 v7, 5, v4\nv_lshl_add_u32 v1, v7, 4, v1\nv_add_u32 v1, s11, v1')
    a('v_and_b32 v6, 31, v4\nv_sub_u32 v6, 31, v6\nv_mul_u32_u24 v3, 80, v6\nv_add_u32 v3, s12, v3\nv_lshl_add_u32 v2, v7, 4, v3')
    a('v_lshlrev_b32 v7, 3, v7\nv_sub_u32 v3, v3, v7')
    a('s_waitcnt lgkmcnt(0)\ns_barrier')
    D1, D0, AR_, BR = 16, 32, 48, 64
    NA, NB = 4, 6
    ops = []
    for u in range(128):
        ops.append((u, 1))
        if u < 64: ops.append((u, 0))
    areg = lambda u: AR_ + 4 * (u % NA)
    rdA = lambda u: [f'ds_read_b64 {vr(areg(u), 2)}, v1 offset:{u * 32}', f'ds_read_b64 {vr(areg(u) + 2, 2)}, v1 offset:{u * 32 + 8}']
    rdB = lambda i: [f'ds_read_b128 {vr(BR + 4 * (i % NB), 4)}, v2 offset:{KVR + (1 - ops[i][1]) * 2560 + 80 * (ops[i][0] >> 1) + 32 * (ops[i][0] & 1)}']
    main = []; fill = {-1: []}
    for u in range(NA): fill[-1] += rdA(u)
    for i in range(NB): fill[-1] += rdB(i)
    for i, (u, N) in enumerate(ops):
        d = vr(D1 if N else D0, 16)
        main.append(f'{MF3232} {d}, {vr(areg(u), 4)}, {vr(BR + 4 * (i % NB), 4)}, {"0" if u == 0 else d}')
        f = []
        if i + NB < len(ops): f += rdB(i + NB)
        if (i + 1 == len(ops) or ops[i + 1][0] != u) and u + NA < 128: f += rdA(u + NA)
        fill[i] = f
    weave(a, main, fill)
    for N in (0, 1):
        for rq in range(4): a(f'ds_read_b64 {vr(48 + 8 * N + 2 * rq, 2)}, v3 offset:{KVR + (1 - N) * 2560 + 56 - 16 * rq}')
    a('s_barrier')
    a(f'v_and_b32 v6, 31, v4\nv_mul_u32_u24 v6, 264, v6\nv_lshrrev_b32 v7, 5, v4\nv_lshl_add_u32 v6, v7, 5, v6\ns_lshl_b32 s9, {sW}, 1\nv_add_u32 v6, s9, v6')
    for N in (0, 1):
        D = D1 if N else D0
        for rq in range(4):
            s0, s1 = 48 + 8 * N + 2 * rq, 49 + 8 * N + 2 * rq
            a(f'v_and_b32 v64, 0xffff0000, v{s1}\nv_lshlrev_b32 v65, 16, v{s1}\nv_and_b32 v66, 0xffff0000, v{s0}\nv_lshlrev_b32 v67, 16, v{s0}')
            for r in range(4): a(f'v_fmac_f32 v{D + 4 * rq + r}, s60, v{64 + r}')
            a(f'v_cvt_pk_bf16_f32 v68, v{D + 4 * rq}, v{D + 4 * rq + 1}\nv_cvt_pk_bf16_f32 v69, v{D + 4 * rq + 2}, v{D + 4 * rq + 3}')
            o = EX + N * 32 * 264 + rq * 64
            a(f'ds_write_b16 v6, v68 offset:{o}\nds_write_b16_d16_hi v6, v68 offset:{o + 8}\nds_write_b16 v6, v69 offset:{o + 16}\nds_write_b16_d16_hi v6, v69 offset:{o + 24}')
    a('v_lshrrev_b32 v6, 5, v0\nv_mul_u32_u24 v6, 264, v6\nv_and_b32 v7, 31, v0\nv_lshl_add_u32 v6, v7, 3, v6\nv_mul_u32_u24 v7, 1152, v0')
    a(f's_lshl_b32 s9, s2, 3\ns_add_u32 s9, s9, {L.Y:#x}')
    a('s_waitcnt lgkmcnt(0)\ns_barrier')
    for j in range(8): a(f'ds_read_b64 {vr(16 + 2 * j, 2)}, v6 offset:{EX + j * 8 * 264}')
    for j in range(8):
        a(f'buffer_store_dwordx2 {vr(16 + 2 * j, 2)}, v7, {WS}, s9 offen\ns_add_u32 s9, s9, {256 * 1152}')
    a('s_endpgm')

def gen_ln1(a):
    a('.p2align 8\nln1_kernel:')
    a('s_cmp_ge_u32 s2, 513\ns_cbranch_scc1 .ln1_end')
    a('s_load_dwordx2 s[16:17], s[0:1], 0\ns_load_dwordx2 s[18:19], s[0:1], 56\ns_load_dwordx2 s[30:31], s[0:1], 120')
    a(f'v_lshrrev_b32 v1, 6, v0\nv_and_b32 v0, 63, v0\nv_readfirstlane_b32 {sW}, v1')
    a('s_waitcnt lgkmcnt(0)')
    srd(a, 4, 30, L.WS_BYTES)
    srd(a, 32, 16, 2359296)
    srd(a, 36, 18, 9216)
    a('s_cmp_lt_u32 s2, 512\ns_cbranch_scc1 .ln1_go')
    bits(a, 'v1', 'v3', [(4, 2, 0)])
    a(f'v_mul_u32_u24 v1, 2304, v1\nv_and_b32 v3, 15, v0\nv_lshl_add_u32 v1, v3, 1, v1\ns_mul_i32 s8, {sW}, 288')
    bits(a, 'v2', 'v3', [(4, 2, 8), (0, 1, 5), (1, 3, 2), (5, 1, 6)])
    bits(a, 'v4', 'v3', [(4, 2, 8), (0, 1, 1), (1, 1, 5), (2, 2, 2), (5, 1, 6)])
    a(f's_lshr_b32 s9, {sW}, 1\ns_lshl_b32 s9, s9, 6\ns_and_b32 s10, {sW}, 1\ns_lshl_b32 s10, s10, 4\ns_or_b32 s9, s9, s10\nv_xor_b32 v4, s9, v4')
    a(f's_lshl_b32 s10, s10, 2\nv_xor_b32 v2, s10, v2\nv_add_u32 v5, 4096, v2')
    a(f's_lshr_b32 s9, {sW}, 1\ns_lshl_b32 s9, s9, 10\ns_add_u32 s9, s9, {L.MR:#x}\ns_add_u32 s10, s9, {L.MR_L:#x}')
    a(f's_mov_b32 s11, {L.MR + 8192:#x}\ns_add_u32 s12, s11, {L.MR_L:#x}')
    for T in range(9):
        for b in range(2): a(f'buffer_load_ushort v{10 + 2 * T + b}, v1, s[36:39], s8 offen offset:{b * 1152 + T * 32}')
    for T in range(9):
        for b in range(2):
            for l in range(2):
                if T < 8: a(f'buffer_store_short v{10 + 2 * T + b}, {"v5" if T < 4 else "v2"}, {WS}, s{9 + l} offen offset:{b * 128 + ((T >> 1) & 1) * 2048 + (T & 1) * 2}')
                else: a(f'buffer_store_short v{10 + 2 * T + b}, v4, {WS}, s{11 + l} offen offset:{b * 128}')
    a('.ln1_end:\ns_endpgm\n.ln1_go:')
    lane48(a, 'v1', 'v2')
    a(f's_lshl_b32 s8, s2, 2\ns_add_u32 s8, s8, {sW}\ns_mul_i32 s8, s8, 1152\ns_add_u32 s9, s8, {L.Y:#x}')
    for i in range(3): a(f'buffer_load_dwordx2 {vr(4 + 2 * i, 2)}, v2, s[32:35], s8 offen offset:{384 * i}')
    for i in range(3): a(f'buffer_load_dwordx2 {vr(10 + 2 * i, 2)}, v2, {WS}, s9 offen offset:{384 * i}')
    unpack(a, 20, 4, 6)
    def st(base):
        def f(r):
            a(f's_add_u32 s9, s8, {base:#x}')
            for i in range(3): a(f'buffer_store_dwordx2 {vr(r + 2 * i, 2)}, v2, {WS}, s9 offen offset:{384 * i}')
        return f
    a_layer(a, 20, 10, 's[24:25]', 's10', st(L.X1), st(L.H1))
    a('s_endpgm')

def kd(name, vg, acc):
    return f'''.amdhsa_kernel {name}
  .amdhsa_next_free_vgpr {vg}
  .amdhsa_next_free_sgpr 102
  .amdhsa_accum_offset {acc}
  .amdhsa_group_segment_fixed_size 0
  .amdhsa_kernarg_size 128
  .amdhsa_user_sgpr_count 2
  .amdhsa_user_sgpr_kernarg_segment_ptr 1
  .amdhsa_system_sgpr_workgroup_id_x 1
  .amdhsa_float_denorm_mode_32 3
.end_amdhsa_kernel
'''

def build(launches=('conv', 'ln1', 'mega')):
    a = Asm()
    gen_conv(a); gen_ln1(a); gen_mega(a)
    body = a.finish(['conv_kernel', 'ln1_kernel', 'mega_kernel'])
    ref = open(f'cdna_kernels/{NAME}.s.ref').read().split('\n')
    hdr = [l for l in ref if l.startswith(';') and 'aunch' not in l and 'grid=' not in l]
    LD = {'conv': f'; @launch kernel=conv_kernel grid=(174,1,1) block=(256,1,1) lds={CONV_LDS}',
          'ln1': '; @launch kernel=ln1_kernel grid=(513,1,1) block=(256,1,1) lds=0',
          'mega': '; @launch kernel=mega_kernel grid=(256,1,1) block=(256,1,1) lds=163840'}
    out = '\n'.join(hdr + [LD[x] for x in launches]) + '\n.amdgcn_target "amdgcn-amd-amdhsa--gfx950"\n.text\n'
    for k in ('conv_kernel', 'ln1_kernel', 'mega_kernel'): out += f'.globl {k}\n.type {k},@function\n'
    out += body
    out += '.section .rodata,"a"\n'
    for k, vg, acc in (('conv_kernel', 96, 96), ('ln1_kernel', 72, 72), ('mega_kernel', 512, 256)):
        out += '.p2align 6\n' + kd(k, vg, acc)
    return out

if __name__ == '__main__':
    import argparse
    ap = argparse.ArgumentParser()
    ap.add_argument('-o', default=f'cdna_kernels/{NAME}.s')
    ap.add_argument('--debug', action='store_true')
    ap.add_argument('--roles', default='cqor')
    ap.add_argument('--launches', default='conv,ln1,mega')
    ap.add_argument('--timeline', action='store_true')
    ap.add_argument('--spos', type=int, default=None)
    ap.add_argument('--fixkv', action='store_true')
    ap.add_argument('--light', action='store_true')
    ap.add_argument('--opt', default='')
    ap.add_argument('--prof', default='')
    ap.add_argument('--steps', type=int, default=64)
    ar = ap.parse_args()
    NSTEPS = ar.steps; TIMELINE = ar.timeline; SPOS = ar.spos; FIXKV = ar.fixkv; LIGHT = ar.light; PROF = [int(x) for x in ar.prof.split(',') if x]
    OPT.update({k: int(v) for k, v in (x.split('=') for x in ar.opt.split(',') if x)})
    DEBUG = ar.debug; ROLES = ar.roles
    open(ar.o, 'w').write(build(ar.launches.split(',')))
```

```python
FKV = 0x0000
FO  = 0x4000
FM  = 0x8000
FP  = 0xA000
FH  = 0xA800
FH1 = 0x10000
FA  = 0x18000
FLAG_BYTES = 0x20000
MR  = 0x20000
SLOT = 33 * 9216
MR_L = 0xE0000
RING_END = 0x1E0000
DBG = 0x1400000
DBG2 = 0x1800000
ROWS = 0x280000
Y   = 0x200000
X1  = Y + ROWS
H1  = X1 + ROWS
X2  = H1 + ROWS
H2  = X2 + ROWS
YB  = H2 + ROWS
KT  = 0x1A00000
KVM = 0xD000000
KVM_V = 2048
O   = 0x2000000
KV  = 0x4000000
PP  = 0x8000000
PP_C = 32 * 24576
WS_BYTES = 268435456

def pi_col(kap, k):
    g, x = k >> 4, k & 15
    p, eta, b = x >> 2, (x >> 1) & 1, x & 1
    j = 2 * p + b
    if kap < 8:
        return 144 * (kap >> 1) + 16 * (4 * (kap & 1) + (j & 3)) + 4 * g + 2 * eta + (j >> 2)
    return 144 * g + 128 + 8 * eta + j
```

```python
import sys, math, struct
from asmlib import Asm, vr
import layout as L

NAME = 'interleave_layers__ssm_conv_h3__memory_aug_recurrent_mem_tr__prompt'
DEBUG = False
NSTEPS = 64
TIMELINE = False
SPOS = None
FIXKV = False
LIGHT = False
PROF = []
OPT = {}
ROLES = 'cqor'

def fbits(x): return struct.unpack('<I', struct.pack('<f', x))[0]
CSC = fbits(128 ** -0.5 * math.log2(math.e))
SMF = 'v_smfmac_f32_16x16x64_bf16'
MF32 = 'v_mfma_f32_16x16x32_bf16'
MF16 = 'v_mfma_f32_16x16x16_bf16'
DPPF = 'row_mask:0xf bank_mask:0xf'

sW, sX, sT, sBUD = 's3', 's8', 's9', 's10'
WS, WQ, WK, WV, WO, OUT = 's[4:7]', 's[32:35]', 's[36:39]', 's[40:43]', 's[44:47]', 's[48:51]'

def srd(a, d, b, nbytes):
    a(f's_mov_b32 s{d}, s{b}\ns_mov_b32 s{d+1}, s{b+1}\ns_mov_b32 s{d+2}, {nbytes:#x}\ns_mov_b32 s{d+3}, 0x20000')

def weave(a, main, fill):
    def em(x):
        if callable(x): x()
        else: a(x)
    for x in fill.get(-1, []): em(x)
    for i, m in enumerate(main):
        em(m)
        for x in fill.get(i, []): em(x)
    for k in fill: assert k < len(main), k

def poll_flag(a, vdst, voff, soff, need, sleep=0, imm=0):
    lp, dn = a.lab('pl'), a.lab('pd')
    a(f'{lp}:')
    a(f'buffer_load_dword {vdst}, {voff}, {WS}, {soff} offen offset:{imm} sc1')
    a(f'v_cmp_gt_u32 vcc, {need}, {vdst}')
    a(f's_cbranch_vccz {dn}')
    if sleep: a(f's_sleep {sleep}')
    a(f's_sub_u32 {sBUD}, {sBUD}, 1\ns_cbranch_scc0 {lp}\ns_mov_b32 {sBUD}, 0')
    a(f'{dn}:')

def warm(a):
    here = a.lab('wm')
    a(f's_getpc_b64 s[100:101]\n{here}:')
    a(f's_sub_u32 s100, s100, {here}-{NAME}_kernel\ns_subb_u32 s101, s101, 0')
    a(f's_lshl_b32 s99, {sT}, 2\ns_add_u32 s99, s99, {sW}\ns_lshl_b32 s99, s99, 10\nv_lshlrev_b32 v8, 4, v0\nv_add_u32 v8, s99, v8\nv_min_u32 v8, .code_end-{NAME}_kernel-16, v8')
    a('global_load_dwordx4 v[8:11], v8, s[100:101]')

def arrive(a):
    sk = a.lab('ar')
    a(f's_cmp_lg_u32 {sW}, 0\ns_cbranch_scc1 {sk}\ns_load_dwordx2 s[100:101], s[0:1], 112')
    a(f'v_mov_b32 v10, {sX}\nv_lshlrev_b32 v10, 5, v10\nv_mov_b32 v11, 1\ns_mov_b64 exec, 1\ns_waitcnt lgkmcnt(0)')
    a(f'global_atomic_add v10, v11, s[100:101] offset:8 sc1\ns_mov_b64 exec, -1\n{sk}:')

def cntwait(a, off, need):
    lp, dn = a.lab('cw'), a.lab('cd')
    a('s_load_dwordx2 s[100:101], s[0:1], 112\nv_and_b32 v12, 7, v0\nv_lshlrev_b32 v12, 5, v12\ns_waitcnt lgkmcnt(0)')
    a(f"""{lp}:
    global_load_dword v13, v12, s[100:101] offset:{off} sc1
    v_cmp_gt_u32 vcc, {need}, v13
    s_cbranch_vccz {dn}
    s_sleep 2
    s_sub_u32 {sBUD}, {sBUD}, 1
    s_cbranch_scc0 {lp}
    s_mov_b32 {sBUD}, 0
    {dn}:""")

def initwait(a): cntwait(a, 4, 32)

def load_units(a, units, vTR, vLW, sLB, sTMP, tmp, NS=9, vPR=None, hook=None):
    toks = {}
    def issue(u):
        s_, vo, sb, imm = units[u][:4]
        t = a.tok('u')
        for q in range(4):
            a(f's_add_u32 m0, {sLB}, {(u % NS) * 4096 + q * 1024}')
            a(f's_add_u32 {sTMP}, {sb}, {imm[q]:#x}')
            a(f'buffer_load_dwordx4 {vo}, {s_}, {sTMP} offen lds', tok=t)
        toks[u] = t
    for u in range(min(NS, len(units))): issue(u)
    for u in range(len(units)):
        a.wait(toks[u])
        if u == 0 and hook: hook()
        d0, d1 = units[u][4], units[u][5]
        perm = len(units[u]) > 6 and units[u][6]
        inplace = d0 == 'lds'
        if inplace: d0, d1 = ('v', tmp + 16), ('v', tmp + 24)
        t0, t1 = (('v', tmp), ('v', tmp + 8)) if perm else (d0, d1)
        so = (u % NS) * 4096
        def wb(r):
            a('s_waitcnt lgkmcnt(0)')
            for i in range(4): a(f'ds_write_b128 {vLW}, {vr(r + 4 * i, 4)} offset:{so + i * 1024}')
        for T, d in enumerate((t0, t1)):
            if d is None: continue
            for rp in range(4):
                a(f'ds_read_b64_tr_b16 {vr(d[1] + 2 * rp, 2, d[0])}, {vTR} offset:{so + T * 32 + (rp & 1) * 256 + (rp >> 1) * 2048}')
        if perm:
            wb(tmp)
            for T, d in enumerate((d0, d1)):
                for hh in range(2):
                    a(f'ds_read_b128 {vr(d[1] + 4 * hh, 4, d[0])}, {vPR} offset:{so + T * 16 + hh * 1024}')
        if inplace: wb(tmp + 16)
        if u + NS < len(units):
            a('s_waitcnt lgkmcnt(0)')
            issue(u + NS)
    a('s_waitcnt lgkmcnt(0)')

def mk_vTR(a, dst, t0, sLB):
    a(f'''v_lshrrev_b32 {dst}, 4, v0
    v_lshlrev_b32 {dst}, 9, {dst}
    v_bfe_u32 {t0}, v0, 2, 2
    v_lshl_add_u32 {dst}, {t0}, 6, {dst}
    v_and_b32 {t0}, 3, v0
    v_lshl_add_u32 {dst}, {t0}, 3, {dst}
    v_add_u32 {dst}, {sLB}, {dst}''')

def bits(a, dst, tmp, fields, const=None):
    first = True
    for lo, wd, sh in fields:
        if first:
            a(f'v_bfe_u32 {dst}, v0, {lo}, {wd}')
            if sh: a(f'v_lshlrev_b32 {dst}, {sh}, {dst}')
            first = False
        else:
            a(f'v_bfe_u32 {tmp}, v0, {lo}, {wd}')
            a(f'v_lshl_add_u32 {dst}, {tmp}, {sh}, {dst}')
    if const is not None: a(f'v_add_u32 {dst}, {const}, {dst}')

def xreduce(a, op, x, t):
    for sw in ('v_permlane16_swap_b32', 'v_permlane32_swap_b32'):
        a(f'v_mov_b32 {t}, {x}\n{sw} {t}, {x}\n{op} {x}, {x}, {t}')

def stamp(a, idx, force=False):
    if PROF and idx in (1, 3, 4, 5) and not force: return
    if DEBUG: a(f's_memtime s[{64 + 2 * idx}:{65 + 2 * idx}]')

def rts(a, vt, idx_sgpr, add):
    if not TIMELINE: return
    sk = a.lab('ts')
    a(f's_cmp_lg_u32 {sW}, 0\ns_cbranch_scc1 {sk}')
    a('s_memrealtime s[100:101]\ns_waitcnt lgkmcnt(0)')
    a(f'v_mov_b32 v{vt}, s100\ns_lshl_b32 s100, {sX}, 5\ns_add_u32 s100, s100, {sT}\ns_lshl_b32 s100, s100, 8')
    if idx_sgpr: a(f's_lshl_b32 s101, {idx_sgpr}, 1\ns_add_u32 s100, s100, s101')
    a(f's_add_u32 s100, s100, {add}\ns_lshl_b32 s100, s100, 2\ns_add_u32 s100, s100, {L.DBG2:#x}')
    a(f'v_mov_b32 v{vt + 1}, 0\ns_mov_b64 exec, 1\nbuffer_store_dword v{vt}, v{vt + 1}, {WS}, s100 offen\ns_mov_b64 exec, -1')
    a(f'{sk}:')

class Stream:
    def __init__(self, a):
        self.a = a; self.m = []; self.g = {}
    def mf(self, text): self.m.append(text); return len(self.m) - 1
    def add(self, pos, kind, *xs):
        self.g.setdefault((pos, kind), []).extend(xs)
    def emit(self):
        a = self.a
        def em(x):
            if callable(x): x()
            else: a(x)
        for (p, k) in self.g: assert -1 <= p < len(self.m), p
        for i in range(-1, len(self.m)):
            if i >= 0: a(self.m[i])
            if i >= 0 and i + 1 < len(self.m) and not self.g.get((i, 'X')):
                ops = self.m[i + 1].split(None, 1)[1]
                a.need(ops)
            for k in 'SDVX':
                for x in self.g.get((i, k), []): em(x)

def gen_chain(a):
    MEM = 147456; QX = MEM + 9216; KXM = QX + 2176; SX = KXM + 2112
    IDX, AR, LW, QR, QW, KR, OR, RW, L2, RR, TA, JK = ['v%d' % i for i in range(12)]
    SC = 12; KV = 16; AQ = 24; ACQ = 40; ACK = 48; Z = 56; X = 64; Yb = 72
    sL, sH, sLB, sTMP, sB0, sB1 = 's11', 's12', 's13', 's14', 's15', 's16'
    sS, sKV, sKO, sVO, sM0, sM1, sM2, sP0, sP1, sU, sKVM, sFM, sFK, sNEED, sSW, sOW, sMW, sPO, sT2 = ['s%d' % i for i in range(52, 64)] + ['s17', 's18', 's19', 's20', 's21', 's22', 's23']
    LO8, HFW, L32 = 's[24:25]', 's[26:27]', 's[28:29]'
    sC, sT3 = 's30', 's31'
    ODD = 's[80:81]'; SM = 82
    sR = ['s90', 's91', 's92', 's93']; sRM = 's94'; sMB = 's95'; sRA = sFM; sRB = 's44'; sTO = 's45'; sPF = 's47'; sPR = 's48'; sM4 = 's49'; sS1 = 's50'; sPV = 's51'; sP8 = 's43'; sUR = sPR
    a('chain:')
    a(f's_mov_b32 {sL}, {sX}\ns_mov_b32 {sH}, {sT}\ns_mul_i32 {sLB}, {sW}, 36864')
    vTR, vo1, vo2, vo3, vPR, t0 = 'v20', 'v21', 'v22', 'v23', 'v19', 'v24'
    mk_vTR(a, vTR, t0, sLB)
    bits(a, LW, t0, [(0, 6, 4)], sLB)
    bits(a, vPR, t0, [(1, 1, 11), (4, 2, 8), (2, 2, 6), (0, 1, 5)], sLB)
    bits(a, vo1, t0, [(0, 2, 4), (2, 1, 17), (3, 1, 16), (4, 2, 14)])
    bits(a, vo2, t0, [(0, 2, 4), (2, 1, 13), (4, 2, 15), (3, 1, 17), (3, 1, 20)])
    bits(a, vo3, t0, [(3, 1, 5), (5, 1, 4), (4, 1, 1), (2, 1, 0)])
    a(f'v_mul_u32_u24 {vo3}, 1152, {vo3}\nv_and_b32 {t0}, 3, v0\nv_lshl_add_u32 {vo3}, {t0}, 4, {vo3}')
    a(f's_lshl_b32 {sB0}, {sH}, 8\ns_lshl_b32 {sTMP}, {sW}, 6\ns_add_u32 {sB0}, {sB0}, {sTMP}')
    a(f's_mul_i32 {sB1}, {sH}, {128 * 1152}\ns_mul_i32 {sTMP}, {sW}, 288\ns_add_u32 {sB1}, {sB1}, {sTMP}')
    ldsu = [('q', 0), ('q', 1), ('q', 7), ('k', 4), ('v', 1), ('o', 0, 0), ('o', 1, 0), ('o', 2, 1), ('o', 3, 1)]
    allu = [(m, k) for m in 'qkv' for k in range(9)] + [('o', p, k) for p in range(5) for k in range(2)]
    order = [u for u in allu if u not in ldsu] + ldsu
    pool = [('a', 8 * i) for i in range(32)] + [('v', 80 + 8 * i) for i in range(22)]
    W = {}
    units = []
    for ui, u in enumerate(order):
        if u[0] == 'o':
            keys = [('o', 2 * u[1], u[2]), ('o', 2 * u[1] + 1, u[2])]
            src = (WO, vo3, sB1, [(64 * u[2] + 4 * q) * 1152 + 64 * u[1] for q in range(4)])
        else:
            keys = [(u[0], 0, u[1]), (u[0], 1, u[1])]
            kap = u[1]
            s_ = {'q': WQ, 'k': WK, 'v': WV}[u[0]]
            if kap < 8: src = (s_, vo1, sB0, [(144 * (2 * (kap & 1) + (q >> 1)) + 32 * ((kap >> 1) ^ 2) + (q & 1)) * 8192 for q in range(4)])
            else: src = (s_, vo2, sB0, [(288 * (q >> 1) + 128 + 2 * (q & 1)) * 8192 for q in range(4)])
        pm = u[0] in 'qk'
        if u in ldsu:
            for T in range(2): W[keys[T]] = ('lds', (ui % 9) * 4096 + T * 2048)
            units.append(src + ('lds', None, pm))
        else:
            d = []
            for T in range(2):
                if keys[T][0] == 'o' and keys[T][1] == 9: d.append(None)
                else:
                    W[keys[T]] = pool.pop(0); d.append(W[keys[T]])
            units.append(src + tuple(d) + (pm,))
    assert not pool
    a(f's_mul_i32 {sM0}, {sL}, {L.MR_L:#x}\ns_add_u32 {sM0}, {sM0}, {L.MR:#x}\ns_mul_i32 {sT2}, {sH}, 9216\ns_add_u32 {sT2}, {sT2}, {sM0}\ns_mul_i32 {sT3}, {sW}, 2304\ns_add_u32 {sT2}, {sT2}, {sT3}')
    a('v_mov_b64 v[28:29], -1\nv_mov_b64 v[30:31], -1\nv_lshlrev_b32 v25, 4, v0\ns_mov_b32 exec_hi, 0xffff')
    for sl in range(3):
        a(f's_add_u32 {sTMP}, {sT2}, {sl * L.SLOT + 9216}')
        for i in range(3): a(f'buffer_store_dwordx4 v[28:31], v25, {WS}, {sTMP} offen offset:{768 * i}')
    c1 = a.lab('c1')
    a(f's_sub_u32 {sTMP}, {sH}, 1\ns_cmp_gt_u32 {sTMP}, 1\ns_cbranch_scc1 {c1}\ns_mul_i32 {sTMP}, {sH}, {L.SLOT}\ns_add_u32 {sTMP}, {sTMP}, {sM0}\ns_add_u32 {sTMP}, {sTMP}, {sT3}')
    for i in range(3): a(f'buffer_store_dwordx4 v[28:31], v25, {WS}, {sTMP} offen offset:{768 * i}')
    a(f'{c1}:\ns_mov_b64 exec, -1\ns_cmp_lg_u32 {sH}, 0\ns_cbranch_scc1 {c1}x')
    a('s_load_dwordx2 s[64:65], s[0:1], 56')
    bits(a, 'v25', 'v29', [(4, 2, 0)])
    a(f'v_mul_u32_u24 v25, 2304, v25\nv_and_b32 v29, 15, v0\nv_lshl_add_u32 v25, v29, 1, v25\ns_mul_i32 s70, {sW}, 288')
    bits(a, 'v26', 'v29', [(4, 2, 8), (0, 1, 5), (1, 3, 2), (5, 1, 6)])
    bits(a, 'v27', 'v29', [(4, 2, 8), (0, 1, 1), (1, 1, 5), (2, 2, 2), (5, 1, 6)])
    a(f's_lshr_b32 s71, {sW}, 1\ns_lshl_b32 s71, s71, 6\ns_and_b32 s72, {sW}, 1\ns_lshl_b32 s72, s72, 4\ns_or_b32 s71, s71, s72\nv_xor_b32 v27, s71, v27')
    a('s_lshl_b32 s72, s72, 2\nv_xor_b32 v26, s72, v26\nv_add_u32 v28, 4096, v26')
    a(f's_lshr_b32 s71, {sW}, 1\ns_lshl_b32 s71, s71, 10\ns_add_u32 s71, s71, {sM0}\ns_add_u32 s72, {sM0}, 8192')
    a('s_waitcnt lgkmcnt(0)\ns_mov_b32 s66, 9216\ns_mov_b32 s67, 0x20000')
    for T in range(9):
        for b in range(2): a(f'buffer_load_ushort v{32 + 2 * T + b}, v25, s[64:67], s70 offen offset:{b * 1152 + T * 32}')
    for T in range(9):
        for b in range(2):
            if T < 8: a(f'buffer_store_short v{32 + 2 * T + b}, {"v28" if T < 4 else "v26"}, {WS}, s71 offen offset:{b * 128 + ((T >> 1) & 1) * 2048 + (T & 1) * 2}')
            else: a(f'buffer_store_short v{32 + 2 * T + b}, v27, {WS}, s72 offen offset:{b * 128}')
    a(f'{c1}x:')
    def hook():
        a('s_barrier'); arrive(a)
    load_units(a, units, vTR, LW, sLB, sTMP, 32, vPR=vPR, hook=hook)
    warm(a)
    initwait(a)
    a(f'v_and_b32 v11, 7, v0\nv_cmp_eq_u32 vcc, {sX}, v11\nv_cndmask_b32 v11, 0, 32, vcc')
    cntwait(a, 8, 'v11')
    rts(a, 30, None, 1)
    bits(a, AR, t0, [(2, 2, 8), (0, 1, 7), (4, 2, 5), (1, 1, 4)])
    a(f'v_and_b32 {t0}, 8, v0\nv_lshlrev_b32 {t0}, 3, {t0}\nv_xor_b32 {AR}, {AR}, {t0}\nv_add_u32 {AR}, {MEM}, {AR}')
    bits(a, QR, t0, [(3, 1, 10), (3, 1, 5), (0, 3, 6), (4, 2, 4)], QX)
    a(f's_lshl_b32 {sTMP}, {sW}, 9\ns_lshr_b32 {sT2}, {sW}, 1\ns_lshl_b32 {sT2}, {sT2}, 5\ns_add_u32 {sTMP}, {sTMP}, {sT2}\ns_add_u32 {sTMP}, {sTMP}, {QX}')
    bits(a, QW, t0, [(4, 2, 7), (0, 4, 2)], sTMP)
    bits(a, KR, t0, [(1, 1, 10), (1, 1, 5), (2, 2, 7), (0, 1, 6), (4, 2, 4)], KXM)
    bits(a, OR, t0, [(1, 1, 9), (1, 1, 5), (2, 2, 7), (0, 1, 6), (4, 2, 4)], QX)
    bits(a, L2, t0, [(0, 6, 1)])
    bits(a, RR, t0, [(3, 3, 0)])
    a(f'v_mul_u32_u24 {RR}, 9216, {RR}\nv_and_b32 {t0}, 7, v0\nv_lshl_add_u32 {RR}, {t0}, 4, {RR}')
    a('s_mov_b32 s24, 0x00ff00ff\ns_mov_b32 s25, 0x00ff00ff')
    a(f's_cmp_ge_u32 {sW}, 2\ns_cselect_b32 s26, 0xff00ff00, s24\ns_mov_b32 s27, s26')
    a('s_mov_b32 s28, -1\ns_mov_b32 s29, 0\ns_mov_b32 s80, 0xaaaaaaaa\ns_mov_b32 s81, 0xaaaaaaaa')
    a(f's_cmp_eq_u32 {sW}, 2\ns_cselect_b32 s80, 0xf0f0f0f0, s80\ns_mov_b32 s81, s80')
    for p in range(4):
        m8 = 0x11111111 << p
        mm = sum(1 << m for m in range(16) if 2 * ((m >> 1) & 1) + ((m >> 2) & 1) == p) * 0x10001
        a(f's_mov_b32 s{SM + 2 * p}, {mm:#x}\ns_cselect_b32 s{SM + 2 * p}, {m8:#x}, s{SM + 2 * p}\ns_mov_b32 s{SM + 2 * p + 1}, s{SM + 2 * p}')
    a(f's_mov_b32 {sC}, {CSC:#x}\ns_mov_b32 {sS}, 0')
    a(f's_lshl_b32 {sKV}, {sL}, 5\ns_add_u32 {sKV}, {sKV}, {sH}\ns_lshl_b32 {sKVM}, {sKV}, 18\ns_lshl_b32 {sKV}, {sKV}, 20')
    a(f's_add_u32 {sKV}, {sKV}, {L.KV:#x}\ns_add_u32 {sKVM}, {sKVM}, {L.KVM:#x}')
    a(f's_and_b32 {sKO}, {sW}, 1\ns_lshl_b32 {sKO}, {sKO}, 12\ns_lshr_b32 {sTMP}, {sW}, 1\ns_lshl_b32 {sTMP}, {sTMP}, 11\ns_add_u32 {sKO}, {sKO}, {sTMP}\ns_sub_u32 {sKO}, {sKO}, {sLB}')
    a(f's_lshl_b32 {sVO}, {sW}, 11\ns_add_u32 {sVO}, {sVO}, 8192\ns_sub_u32 {sVO}, {sVO}, {sLB}')
    a(f's_mul_i32 {sM0}, {sL}, {L.MR_L:#x}\ns_add_u32 {sM0}, {sM0}, {L.MR:#x}\ns_add_u32 {sM1}, {sM0}, {L.SLOT}\ns_add_u32 {sM2}, {sM0}, {2 * L.SLOT}')
    a(f's_mul_i32 {sPO}, {sH}, 9216\ns_add_u32 {sPO}, {sPO}, 9216')
    a(f'''s_lshl_b32 {sU}, {sW}, 5
    s_add_u32 {sU}, {sU}, {sH}
    s_lshr_b32 {sTMP}, {sH}, 2
    s_add_u32 {sTMP}, {sTMP}, 64
    s_cmp_eq_u32 {sW}, 2
    s_cselect_b32 {sU}, {sTMP}, {sU}
    s_lshl_b32 {sU}, {sU}, 7
    s_and_b32 {sTMP}, {sH}, 3
    s_cmp_eq_u32 {sTMP}, 0
    s_cselect_b32 {sTMP}, 3, 2
    s_cmp_ge_u32 {sW}, {sTMP}
    s_cselect_b32 {sU}, -1, {sU}''')
    a(f's_lshl_b32 {sFK}, {sL}, 5\ns_add_u32 {sFK}, {sFK}, {sH}\ns_lshl_b32 {sFK}, {sFK}, 8\ns_add_u32 {sFK}, {sFK}, {L.FKV:#x}')
    a(f's_and_b32 {sSW}, {sW}, 1\ns_mul_i32 {sSW}, {sSW}, 1056\ns_lshr_b32 {sTMP}, {sW}, 1\ns_mul_i32 {sTMP}, {sTMP}, 544\ns_sub_u32 {sSW}, {sSW}, {sTMP}\ns_add_u32 {sSW}, {sSW}, {SX - QX}')
    a(f's_mul_i32 {sOW}, {sW}, 544\ns_lshl_b32 {sMW}, {sW}, 11\ns_lshl_b32 {sMB}, {sW}, 8\ns_add_u32 {sMB}, {sMB}, 8192')
    a(f'''s_lshr_b32 {sT2}, {sU}, 3
    s_lshr_b32 {sT3}, {sU}, 2
    s_xor_b32 {sT2}, {sT2}, {sT3}
    s_and_b32 {sT2}, {sT2}, 64
    s_and_b32 {sT3}, {sU}, 0x3c00
    s_add_u32 {sB0}, {sT2}, {sT3}
    s_and_b32 {sT3}, {sU}, 0x180
    s_lshl_b32 {sT3}, {sT3}, 1
    s_add_u32 {sB0}, {sB0}, {sT3}
    s_cmp_lt_u32 {sW}, 2
    s_cselect_b32 {sT3}, 0x1000, 0
    s_xor_b32 {sB0}, {sB0}, {sT3}''')
    bits(a, RW, t0, [(0, 4, 2), (4, 1, 7)], sB0)
    a(f'v_bfe_u32 {t0}, v0, 1, 1\nv_mul_u32_u24 {t0}, 0xaaaa, {t0}\nv_add_u32 {IDX}, 0x4444, {t0}')
    a(f'''s_mov_b32 {sRA}, 0
    s_mov_b32 {sRB}, {sM0}
    s_mov_b32 {sRM}, {L.RING_END:#x}
    s_lshr_b32 {sP0}, {sW}, 1
    s_lshl_b32 {sP0}, {sP0}, 5
    s_add_u32 {sP0}, {sP0}, {QX}
    s_lshl_b32 {sTMP}, {sH}, 7
    s_cmp_eq_u32 {sU}, -1
    s_cselect_b32 {sUR}, {sTMP}, {sU}
    s_lshl_b32 {sM4}, {sW}, 10
    s_lshr_b32 {sP8}, {sW}, 1
    s_lshl_b32 {sP8}, {sP8}, 9
    s_and_b32 {sTMP}, {sW}, 1
    s_lshl_b32 {sTMP}, {sTMP}, 6
    s_add_u32 {sP8}, {sP8}, {sTMP}
    s_add_u32 {sP8}, {sP8}, 8192
    s_lshl_b32 {sTO}, {sW}, 12
    s_add_u32 {sTO}, {sTO}, {0 if FIXKV else 16384}
    s_mov_b32 s96, 0x3f803f80
    s_mov_b32 s97, 0x3f803f80''')
    def pollkv(sfl):
        lp, dn = a.lab('pl'), a.lab('pd')
        a(f'''{lp}:
        buffer_load_ushort {JK}, {L2}, {WS}, {sfl} offen sc1
        v_cmp_gt_u32 vcc, {sNEED}, {JK}
        s_cbranch_vccz {dn}
        s_sub_u32 {sBUD}, {sBUD}, 1
        s_cbranch_scc0 {lp}
        s_mov_b32 {sBUD}, 0
        {dn}:''')
    a(f's_mov_b32 {sNEED}, 1')
    pollkv(sFK)
    KX, VX = KV, Yb
    ldKV = lambda r, so: [f'buffer_load_dwordx4 {vr(r, 4)}, {LW}, {WS}, {so} offen sc1', f'buffer_load_dwordx4 {vr(r + 4, 4)}, {LW}, {WS}, {so} offen offset:1024 sc1']
    a(f's_add_u32 {sTMP}, {sKV}, {sKO}\ns_add_u32 {sKO}, {sKO}, {0 if FIXKV else 16384}')
    for x in ldKV(KX, sTMP): a(x)
    def ldfrag(key, buf):
        off = W[key][1]
        return [f'ds_read_b128 {vr(buf, 4)}, {LW} offset:{off}', f'ds_read_b128 {vr(buf + 4, 4)}, {LW} offset:{off + 1024}']
    fb = {('q', 0, 0): ACK, ('q', 1, 0): VX, ('q', 0, 1): X, ('q', 1, 1): Z, ('q', 0, 7): X, ('q', 1, 7): Z,
          ('k', 0, 4): X, ('k', 1, 4): Z, ('v', 0, 1): X, ('v', 1, 1): KX,
          ('o', 0, 0): VX, ('o', 1, 0): ACK, ('o', 2, 0): VX, ('o', 3, 0): ACK, ('o', 4, 1): VX, ('o', 5, 1): ACK, ('o', 6, 1): 24, ('o', 7, 1): VX}
    assert set(fb) == {k for k in W if W[k][0] == 'lds'}
    wop = lambda key: vr(fb[key], 8) if key in fb else vr(W[key][1], 8, W[key][0])
    lf = lambda key: ldfrag(key, fb[key])
    aslot = lambda k: AQ + 4 * (k % 4)
    rdA = lambda k: f'ds_read_b128 {vr(aslot(k), 4)}, {AR} offset:{k * 1024}'
    z2 = lambda r: f'v_mov_b64 {vr(r, 2)}, 0'
    pre = [('q', 0, 0), ('q', 0, 1), ('q', 1, 0), ('q', 1, 1)]
    acc = {'q': ACQ, 'k': ACK, 'v': Z}
    sm = lambda m, T, k: f'{SMF} {vr(acc[m] + 4 * T, 4)}, {vr(aslot(k), 4)}, {wop((m, T, k))}, {IDX}'

    ool = []
    LOOP, XIT, REDO = a.lab('cloop'), a.lab('cexit'), a.lab('credo')
    a(f's_branch {REDO}x')
    a(f'{REDO}:\ns_waitcnt vmcnt(0) lgkmcnt(0)\n{REDO}x:')
    for k in (pre[0], pre[3]):
        for x in lf(k): a(x)
    a(f'{LOOP}:')
    i_loop = len(a.ins)
    a(f"""s_add_u32 {sTMP}, {sM0}, {sM4}
    s_sub_u32 {sTMP}, {sTMP}, {sLB}
    s_add_u32 m0, {sM4}, {MEM}""")
    a('s_barrier')
    if DEBUG: a('s_memtime s[98:99]')
    for r in range(ACQ, ACQ + 8, 2): a(z2(r))
    a(f"""v_lshlrev_b32 {TA}, 1, {L2}
    s_add_u32 {sTO}, {sTMP}, 4096
    s_add_u32 {sT2}, {sM0}, {sMB}
    s_add_u32 {sT3}, {sKV}, {sVO}
    s_add_u32 {sS1}, {sS}, 1
    s_mov_b32 {sPV}, 0
    s_and_b32 {sPF}, {sS1}, 1
    s_lshl_b32 {sPF}, {sPF}, 7
    s_add_u32 {sPF}, {sPF}, {sFK}
    s_lshr_b32 {sNEED}, {sS1}, 1
    s_add_u32 {sNEED}, {sNEED}, 1
    s_min_u32 {sNEED}, {sNEED}, 32""")
    for _ in range(OPT.get('dB', 8)): a('s_nop 3')
    tb0, tb1 = a.tok('b'), a.tok('b')
    shot = f'buffer_load_dwordx4 {LW}, {WS}, {sTMP} offen sc1 lds'
    rest = f"""s_add_u32 m0, {sM4}, {MEM + 4096}
    buffer_load_dwordx4 {LW}, {WS}, {sTO} offen sc1 lds
    s_add_u32 m0, {sMB}, {MEM}
    buffer_load_dword {TA}, {WS}, {sT2} offen sc1 lds
    s_add_u32 m0, {sM4}, {MEM}"""
    a(shot, tok=tb0)
    for k in (pre[1], pre[2]):
        for x in lf(k): a(x)
    for _ in range(OPT.get('dS', 3)): a('s_nop 3')
    a(rest)
    a(shot)
    a.wait(tb0)
    BG = a.lab('bg')
    a(f's_barrier\n{BG}:')
    br = a.lab('br')
    ool.append(f"""{br}:
    s_sub_u32 {sBUD}, {sBUD}, 1
    s_cbranch_scc1 {br}c
    v_mov_b64 {vr(ACQ, 2)}, 0
    v_mov_b64 {vr(ACQ + 2, 2)}, 0
    v_mov_b64 {vr(ACQ + 4, 2)}, 0
    v_mov_b64 {vr(ACQ + 6, 2)}, 0
    s_add_u32 {sPV}, {sPV}, 1
    s_cmp_lt_u32 {sPV}, 2
    s_waitcnt vmcnt(0)
    s_cbranch_scc1 {br}d
    {rest}
    {br}d:
    {shot}
    s_branch {BG}
    {br}c:
    s_mov_b32 {sBUD}, 0
    s_branch {br}b""")
    i_s0 = len(a.ins)
    stamp(a, 0)
    if DEBUG: a(f's_mov_b32 s76, {sBUD}')
    st = Stream(a)
    for k in range(9):
        for T in range(2): st.mf(sm('q', T, k))
    sx = [f'{MF32} {vr(SC, 4)}, {vr(KX, 4)}, {vr(ACQ, 4)}, 0', f'{MF32} {vr(SC, 4)}, {vr(KX + 4, 4)}, {vr(ACQ + 4, 4)}, {vr(SC, 4)}']
    for k in range(8, -1, -1):
        if k == 2:
            for x in sx: st.mf(x)
        for T in range(2): st.mf(sm('k', T, k))
    def D(*items):
        for p, x in items: st.add(p, 'D', x)
    st.add(-1, 'D', *[rdA(k) for k in range(4)])
    st.add(1, 'S', lambda: a.need(vr(AQ, 12))); st.add(1, 'V', f'v_max3_u32 v{SC}, v{AQ}, v{AQ + 4}, v{AQ + 8}')
    st.add(2, 'S', lambda: a.need(vr(AQ, 16))); st.add(2, 'V', f'v_max_u32 v{SC}, v{SC}, v{AQ + 12}')
    st.add(3, 'V', f'v_cmp_eq_u32 vcc, -1, v{SC}')
    st.add(4, 'X', 's_waitcnt vmcnt(1)', f's_cbranch_vccnz {br}', f'{br}b:', 's_barrier', rdA(4))
    fx, fz = lf(('q', 0, 7)), lf(('q', 1, 7))
    lv = ldKV(VX, sT3)
    D((5, rdA(5)), (6, f'buffer_load_ushort {JK}, {L2}, {WS}, {sPF} offen sc1'), (6, rdA(6)), (7, fx[0]), (8, fx[1]), (9, rdA(7)), (10, fz[0]), (11, fz[1]), (12, rdA(8)), (13, lv[0]))
    fx, fz = lf(('k', 0, 4)), lf(('k', 1, 4))
    D((14, fx[0]), (15, fx[1]), (16, fz[0]), (17, fz[1]), (18, lv[1]))
    D((19, rdA(4)), (21, rdA(3)), (23, rdA(2)), (25, rdA(1)), (28, rdA(0)))
    for i, p in enumerate((5, 7, 8, 9)): st.add(p, 'V', z2(ACK + 2 * i))
    st.add(10, 'V', f'v_mov_b32 v{SC}, -1')
    st.add(11, 'V', f'v_add_u32 {TA}, {sSW}, {QR}')
    st.add(12, 'S', f'buffer_store_short v{SC}, {L2}, {WS}, {sRM} offen')
    st.add(8, 'S', f's_add_u32 {sTMP}, {sKV}, {sKO}'); st.add(20, 'S', f's_sub_u32 {sT3}, {sKVM}, {sP0}')
    def epi(acc_, pk):
        ad = [f'v_add_f32 v{acc_ + i}, v{acc_ + i}, v{acc_ + i + 2}' for i in (0, 1, 4, 5)]
        if pk == 'T': cv = [f'v_cvt_pk_bf16_f32 v{acc_}, v{acc_}, v{acc_+4}', f'v_cvt_pk_bf16_f32 v{acc_+1}, v{acc_+1}, v{acc_+5}']
        else: cv = [f'v_cvt_pk_bf16_f32 v{acc_}, v{acc_}, v{acc_+1}', f'v_cvt_pk_bf16_f32 v{acc_+1}, v{acc_+4}, v{acc_+5}']
        return ad + cv
    tq, tk, tkm, trs = a.tok('q'), a.tok('k'), a.tok('km'), a.tok('rs')
    e = epi(ACQ, 'T')
    st.add(19, 'V', e[0], e[1]); st.add(20, 'V', e[2], e[3]); st.add(21, 'V', e[4], e[5])
    st.add(22, 'D', lambda: a(f'ds_write2_b32 {QW}, v{ACQ}, v{ACQ + 1} offset1:16', tok=tq))
    st.add(22, 'V', f'v_cmp_u_f32 vcc, v{ACQ + 4}, v{ACQ + 5}')
    rd = a.lab('rd')
    st.add(24, 'S', f's_cbranch_vccnz {rd}', f'{rd}b:')
    for i, p in enumerate((28, 29, 32, 33)): st.add(p, 'V', z2(Z + 2 * i))
    st.add(26, 'X', lambda: a.wait(tq), 's_barrier', f'ds_read_b128 {vr(ACQ, 4)}, {QR}', f'ds_read_b128 {vr(ACQ + 4, 4)}, {QR} offset:512')
    fx, fz = lf(('v', 0, 1)), lf(('v', 1, 1))
    D((29, fx[0]), (30, fx[1]), (32, fz[0]), (33, fz[1]))
    st.add(34, 'X', f's_mov_b64 exec, {HFW}', f'ds_write_b128 {TA}, {vr(SC, 4)}', 's_mov_b64 exec, -1')
    fk = a.lab('fk')
    ool.append(f"""{fk}:
    buffer_load_ushort {JK}, {L2}, {WS}, {sPF} offen sc1
    v_cmp_gt_u32 vcc, {sNEED}, {JK}
    s_cbranch_vccz {fk}b
    s_sub_u32 {sBUD}, {sBUD}, 1
    s_cbranch_scc0 {fk}
    s_mov_b32 {sBUD}, 0
    s_branch {fk}b""")
    vp = {}
    def vq(n):
        for _ in range(n):
            i = len(vp); vp[i] = st.mf(sm('v', i & 1, i >> 1))
            if i & 1 and (i >> 1) + 4 < 9: st.add(vp[i], 'D', rdA((i >> 1) + 4))
        return len(st.m) - 1
    p = vq(2)
    e = epi(ACK, 'T')
    st.add(p, 'X', e[0], e[2], e[4], f'ds_write_b32 {QW}, v{ACK} offset:{KXM - QX}', e[1], e[3], e[5],
           lambda: a(f'ds_write_b32 {QW}, v{ACK + 1} offset:{KXM - QX + 64}', tok=tk))
    p = vq(1); st.add(p, 'D', f'buffer_store_dword v{ACK}, {QW}, {WS}, {sT3} offen sc1')
    p = vq(1); st.add(p, 'S', f's_lshr_b32 {sT2}, {sMW}, 2')
    p = vq(1); st.add(p, 'D', f'buffer_store_dword v{ACK + 1}, {QW}, {WS}, {sT3} offen offset:64 sc1')
    p = vq(1)
    S0, S1 = X, X + 4
    st.add(SPOS if SPOS is not None else p, 'S', lambda: stamp(a, 5))
    st.add(p, 'X', lambda: a.wait(tk), 's_barrier', f'ds_read_b128 {vr(ACK, 4)}, {KR}', f'ds_read_b128 {vr(ACK + 4, 4)}, {KR} offset:512',
           f'ds_read_b128 {vr(S0, 4)}, {QR} offset:{SX - QX}', f'ds_read_b128 {vr(S1, 4)}, {QR} offset:{SX - QX + 512}')
    P, PMa, PMb = ACK, ACK + 4, ACK + 6
    lk = ldKV(KX, sTMP)
    p = vq(1); st.add(p, 'S', f's_add_u32 {sT3}, {sT2}, {sKVM}')
    p = vq(1); st.add(p, 'S', lambda: a.need(JK)); st.add(p, 'V', f'v_cmp_gt_u32 vcc, {sNEED}, {JK}')
    def dbgst():
        a(f's_lshl_b32 {sTO}, {sL}, 5\ns_add_u32 {sTO}, {sTO}, {sH}\ns_lshl_b32 {sTO}, {sTO}, 2\ns_add_u32 {sTO}, {sTO}, {sW}\ns_lshl_b32 {sTO}, {sTO}, 6\ns_add_u32 {sTO}, {sTO}, {sS}\ns_lshl_b32 {sTO}, {sTO}, 6\ns_add_u32 {sTO}, {sTO}, {L.DBG:#x}')
        for i in range(10): a(f'v_writelane_b32 {TA}, s{32 + i}, {i}')
        a(f'v_lshlrev_b32 v{SC}, 1, {L2}\ns_mov_b64 exec, 0x3ff\nbuffer_store_dword {TA}, v{SC}, {WS}, {sTO} offen\ns_mov_b64 exec, -1')
    if DEBUG: st.add(p, 'X', dbgst)
    if TIMELINE: st.add(p, 'X', lambda: rts(a, SC, sS, 2))
    p = vq(1); st.add(p, 'S', f's_cbranch_vccnz {fk}', f'{fk}b:'); st.add(p, 'D', lk[0]); st.add(p, 'V', f'v_lshlrev_b32 {JK}, 2, {L2}')
    p = vq(OPT.get('v1', 3) - 1)
    p = st.mf(f'{MF32} {vr(SC, 4)}, {vr(ACK, 4)}, {vr(ACQ, 4)}, 0')
    st.add(p, 'D', lk[1])
    p = st.mf(f'{MF32} {vr(SC, 4)}, {vr(ACK + 4, 4)}, {vr(ACQ + 4, 4)}, {vr(SC, 4)}')
    EM, MX, TT = S1, S1 + 1, S1 + 2
    st.add(p, 'V', *[f'v_add_f32 v{S0 + r}, v{S0 + r}, v{S1 + r}' for r in range(4)])
    st.add(p, 'V', f'v_max3_f32 v{MX}, v{S0}, v{S0+1}, v{S0+2}', f'v_mov_b32 v{PMa + 1}, 0', f'v_mov_b32 v{PMb}, 0', f'v_add_u32 {TA}, {sOW}, {QR}')
    st.add(p, 'V', f'v_add_f32_dpp v{EM}, v{SC+2}, v{SC} row_ror:8 row_mask:0xf bank_mask:0x3', f'v_add_f32_dpp v{EM}, v{SC+1}, v{SC+3} row_ror:8 row_mask:0xf bank_mask:0xc',
           f'v_max3_f32 v{MX}, v{MX}, v{S0+3}, v{EM}')
    ON = SC
    p = vq(1); st.add(p, 'V', f'v_max_f32_dpp v{MX}, v{MX}, v{MX} row_ror:8 {DPPF}', f'v_mov_b32 v{TT}, v{MX}')
    p = vq(1); st.add(p, 'V', f'v_permlane16_swap_b32 v{TT}, v{MX}', f'v_max_f32 v{MX}, v{MX}, v{TT}', f'v_mov_b32 v{TT}, v{MX}')
    p = vq(1); st.add(p, 'V', f'v_permlane32_swap_b32 v{TT}, v{MX}', f'v_max_f32 v{MX}, v{MX}, v{TT}', f'v_mul_f32 v{MX}, {sC}, v{MX}')
    sv = list(range(S0, S0 + 4)) + [EM]
    st.add(p, 'V', *[f'v_fma_f32 v{r}, v{r}, {sC}, -v{MX}' for r in sv])
    rem = 18 - len(vp) - 2
    if rem > 0: p = vq(rem)
    st.add(p, 'V', *[f'v_exp_f32 v{r}, v{r}' for r in sv])
    st.add(p, 'V', f'v_cvt_pk_bf16_f32 v{P}, v{S0}, v{S0+1}', f'v_cvt_pk_bf16_f32 v{P+1}, v{S0+2}, v{S0+3}')
    p = vq(1); st.add(p, 'V', f'v_mov_b32_dpp v{P+2}, v{P} row_ror:8 {DPPF}', f'v_mov_b32_dpp v{P+3}, v{P+1} row_ror:8 {DPPF}')
    p = vq(1); st.add(p, 'V', f'v_mov_b32_dpp v{TT}, v{EM} row_ror:8 {DPPF}')
    assert len(vp) == 18
    O0, O1, SU = ACQ, ACQ + 4, S0
    p = st.mf(f'{MF32} {vr(O0, 4)}, {vr(VX, 4)}, {vr(P, 4)}, 0')
    st.add(p, 'V', f'v_mov_b64 {vr(ON, 2)}, s[96:97]', f'v_mov_b64 {vr(ON + 2, 2)}, s[96:97]')
    p = st.mf(f'{MF32} {vr(O1, 4)}, {vr(VX + 4, 4)}, {vr(P, 4)}, 0')
    st.add(p, 'V', f'v_cvt_pk_bf16_f32 v{PMa}, v{EM}, v{TT}', f'v_cvt_pk_bf16_f32 v{PMb+1}, v{EM}, v{TT}')
    p = st.mf(f'{MF32} {vr(SU, 4)}, {vr(ON, 4)}, {vr(P, 4)}, 0')
    f = lf(('o', 0, 0)); st.add(p, 'D', f[0])
    st.add(p, 'V', *epi(Z, 'R'))
    p = st.mf(f'{MF16} {vr(SU, 4)}, {vr(ON, 2)}, {vr(PMa, 2)}, {vr(SU, 4)}'); st.add(p, 'D', f[1])
    p = st.mf(f'{MF16} {vr(O0, 4)}, {vr(Z, 2)}, {vr(PMa, 2)}, {vr(O0, 4)}')
    st.add(p, 'D', f'buffer_store_dwordx2 {vr(Z, 2)}, {JK}, {WS}, {sT3} offen offset:{L.KVM_V} sc1'); st.add(p, 'V', z2(24))
    p = st.mf(f'{MF16} {vr(O1, 4)}, {vr(Z, 2)}, {vr(PMb, 2)}, {vr(O1, 4)}')
    st.add(p, 'D', *lf(('o', 1, 0)))
    for i_, p_ in zip((1, 3, 4, 5), PROF): st.add(p_, 'S', lambda i_=i_: stamp(a, i_, True))
    st.emit()
    stamp(a, 1)
    oacc = {0: 24, 1: 28, 2: 32, 3: 36, 4: X, 5: X + 4, 6: ACQ + 4, 7: ACQ, 8: SC}
    a(z2(26))
    a(f'v_rcp_f32 v{SU}, v{SU}')
    a(z2(28)); a(z2(30))
    for r in range(0, 8, 2): a(f'v_pk_mul_f32 {vr(O0 + r, 2)}, {vr(O0 + r, 2)}, {vr(SU, 2)} op_sel_hi:[1,0]')
    a(f's_mov_b64 exec, {LO8}')
    for r in range(4): a(f'v_cvt_pk_bf16_f32 v{O0 + r}, v{O0 + 2 * r}, v{O0 + 2 * r + 1}')
    a(f'ds_write_b128 {TA}, {vr(O0, 4)}\ns_mov_b64 exec, -1')
    for r in list(range(32, 40, 2)) + list(range(X, X + 8, 2)) + [SC, SC + 2]: a(z2(r))
    a(f'v_and_b32 {TA}, 0x60, {L2}\nv_add_lshl_u32 {TA}, {TA}, {L2}, 1')
    a('s_waitcnt lgkmcnt(0)\ns_barrier')
    a(f'ds_read_b128 {vr(Z, 4)}, {OR}\nds_read_b128 {vr(Z + 4, 4)}, {OR} offset:1088')
    for r in range(ACQ, ACQ + 8, 2): a(z2(r))
    a(f's_add_u32 {sTMP}, {sM0}, {sPO}\ns_add_u32 {sT3}, {sTMP}, {sT2}\ns_add_u32 {sT2}, {sTMP}, {sP8}\ns_add_u32 {sTMP}, {sT3}, 4096')
    a(f's_add_u32 {sRM}, {sM0}, {sUR}')
    for i in range(4): a(f's_add_u32 {sR[i]}, {sRM}, {(8 * i + 1) * 9216}')
    stamp(a, 2)
    if DEBUG: a('s_memrealtime s[100:101]')
    oseq = [(0, 0), (1, 0), (0, 1), (1, 1), (8, 0), (8, 1), (2, 0), (3, 0), (2, 1), (3, 1), (4, 0), (5, 0), (4, 1), (5, 1), (6, 0), (7, 0), (6, 1), (7, 1)]
    st = Stream(a)
    for T, k in oseq: st.mf(f'{SMF} {vr(oacc[T], 4)}, {vr(Z + 4 * k, 4)}, {wop(("o", T, k))}, {IDX}')
    f = lf(('o', 2, 0)) + lf(('o', 3, 0))
    for i in range(4): st.add(i, 'D', f[i])
    f = lf(('o', 4, 1)) + lf(('o', 5, 1)) + lf(('o', 6, 1)) + lf(('o', 7, 1))
    for i in range(8): st.add(6 + i, 'D', f[i])
    def oepi(p, pk=False):
        A, B = oacc[2 * p], oacc[2 * p + 1]
        if pk: ad = [f'v_pk_add_f32 {vr(A, 2)}, {vr(A, 2)}, {vr(A + 2, 2)}', f'v_pk_add_f32 {vr(B, 2)}, {vr(B, 2)}, {vr(B + 2, 2)}']
        else: ad = [f'v_add_f32 v{A}, v{A}, v{A+2}', f'v_add_f32 v{A+1}, v{A+1}, v{A+3}', f'v_add_f32 v{B}, v{B}, v{B+2}', f'v_add_f32 v{B+1}, v{B+1}, v{B+3}']
        return ad + [f'v_cvt_pk_bf16_f32 v{A}, v{A}, v{B}', f'v_cvt_pk_bf16_f32 v{A + 1}, v{A+1}, v{B+1}', f'v_and_or_b32 v{A}, v{A}, -2, {sRA}']
    pst = lambda p: f'buffer_store_dwordx2 {vr(oacc[2 * p], 2)}, {JK}, {WS}, {[sT3, sTMP][p >> 1]} offen offset:{(p & 1) * 2048}'
    for x, p in zip(oepi(0), [5, 5, 6, 6, 7, 7, 7]): st.add(p, 'V', x)
    st.add(8, 'S', pst(0))
    st.add(8, 'V', f'v_add_f32 v{SC}, v{SC}, v{SC+2}'); st.add(9, 'V', f'v_add_f32 v{SC+1}, v{SC+1}, v{SC+3}'); st.add(10, 'V', f'v_cvt_pk_bf16_f32 v{SC}, v{SC}, v{SC+1}', f'v_and_or_b32 v{SC}, v{SC}, -2, {sRA}')
    st.add(11, 'S', f'buffer_store_dword v{SC}, {TA}, {WS}, {sT2} offen')
    for x, p in zip(oepi(1), [11, 11, 12, 12, 13, 13, 13]): st.add(p, 'V', x)
    st.add(14, 'D', pst(1))
    for x, p in zip(oepi(2), [15, 15, 16, 16, 17, 17, 17]): st.add(p, 'V', x)
    st.add(17, 'X', pst(2))
    st.emit()
    for x in oepi(3, True): a(x)
    a(pst(3))
    stamp(a, 3)
    a(f's_add_u32 {sS}, {sS}, 1\ns_cmp_eq_u32 {sS}, {NSTEPS}\ns_cbranch_scc1 {XIT}')
    a(f's_add_u32 {sKV}, {sKV}, {0 if FIXKV else 16384}\ns_add_u32 {sKVM}, {sKVM}, 4096')
    i_s1 = len(a.ins)
    nr, pb = a.lab('nr'), a.lab('pb')
    a(f's_cmp_eq_u32 {sU}, -1\ns_cbranch_scc1 {nr}')
    a(f's_cmp_lg_u32 {sW}, 1\ns_cbranch_scc1 {nr}e')
    for _ in range(OPT.get('dA', 12)): a('s_nop 3')
    a(f'{nr}e:')
    SET = [24, X]
    def ashot(k):
        for i in range(4): a(f'buffer_load_dwordx4 {vr(SET[k] + 4 * i, 4)}, {RR}, {WS}, {sR[i]} offen sc1')
    def ared(k):
        b = SET[k]
        for i in range(4):
            a(f'{MF32} v[44:47], v[40:43], {vr(b + 4 * i, 4)}, {"0" if i == 0 else "v[44:47]"}')
            a(f'v_bitop3_b32 v{SC + i % 2 + (i > 1)}, v{b + 4 * i}, v{b + 4 * i + 2}, {sRA} bitop3:0x7e')
            if i == 1: a(f'v_or_b32 v{SC}, v{SC}, v{SC + 1}')
        a(f'v_or3_b32 v{SC}, v{SC}, v{SC + 1}, v{SC + 2}\nv_and_b32 v{SC}, 1, v{SC}\nv_cmp_ne_u32 vcc, 0, v{SC}')
    ashot(0)
    a(f'v_mov_b32 v44, 0x3f80\nv_mov_b32 v45, 0x3f800000\nv_cndmask_b32 v44, v44, v45, {ODD}')
    for p in range(4): a(f'v_cndmask_b32 v{40 + p}, 0, v44, s[{SM + 2 * p}:{SM + 2 * p + 1}]')
    for k in (pre[0], pre[3]):
        for x in lf(k): a(x)
    for _ in range(OPT.get('dT', 12)): a('s_nop 3')
    ashot(1)
    lp = a.lab('ha')
    a(f'{lp}:')
    ared(0)
    a(f's_cbranch_vccnz {lp}r\n{pb}:')
    a(f'''s_mov_b64 exec, {L32}
    v_add_f32_dpp v{SC}, v44, v44 row_ror:8 row_mask:0xf bank_mask:0x3
    v_add_f32_dpp v{SC + 1}, v45, v45 row_ror:8 row_mask:0xf bank_mask:0x3
    v_add_f32_dpp v{SC}, v46, v46 row_ror:8 row_mask:0xf bank_mask:0xc
    v_add_f32_dpp v{SC + 1}, v47, v47 row_ror:8 row_mask:0xf bank_mask:0xc
    v_cvt_pk_bf16_f32 v44, v{SC}, v{SC + 1}
    buffer_store_dword v44, {RW}, {WS}, {sM1} offen
    s_mov_b64 exec, -1''')
    def aretry():
        a(f'{lp}r:')
        ashot(0)
        a(f's_sub_u32 {sBUD}, {sBUD}, 1\ns_cselect_b32 {sBUD}, 0, {sBUD}')
        ared(1)
        a(f's_cbranch_vccz {pb}')
        ashot(1)
        a(f's_sub_u32 {sBUD}, {sBUD}, 1\ns_cbranch_scc0 {lp}\ns_mov_b32 {sBUD}, 0\ns_branch {pb}')
    ool.append(aretry)
    a(f's_branch {nr}j')
    a(f'{nr}:')
    for k in (pre[0], pre[3]):
        for x in lf(k): a(x)
    a(f'{nr}j:')
    if OPT.get('nohop'):
        keep = []
        for i_, x in enumerate(a.ins):
            mn = getattr(x, 'mn', '')
            if i_loop <= i_ < i_s0:
                if x.kind == 'vmem' or mn == 's_nop': continue
            elif i_s0 <= i_ < i_s1:
                if OPT.get('novm') and x.kind == 'vmem': continue
                if OPT.get('nobr') and mn == 's_cbranch_vccnz': continue
                if OPT.get('nobar') and mn == 's_barrier': continue
                if OPT.get('nods') and mn == 'ds_read_b128' and (LW + ' ' in x.text or AR + ' ' in x.text): continue
                if OPT.get('nodw') and mn.startswith('ds_write'): continue
                if OPT.get('nova') and x.kind == 'valu': continue
            elif i_ >= i_s1 and not x.label and x.kind != 'ds': continue
            keep.append(x)
        a.ins = keep
    stamp(a, 4)
    if DEBUG:
        a('s_waitcnt lgkmcnt(0)')
        a(f's_mov_b32 s78, {sBUD}')
        for i in range(8): a(f's_mov_b32 s{32 + i}, s{64 + 2 * i}')
        a('s_mov_b32 s40, s98\ns_mov_b32 s41, s100')
    a(f's_mov_b32 {sTMP}, {sM0}\ns_mov_b32 {sM0}, {sM1}\ns_mov_b32 {sM1}, {sM2}\ns_mov_b32 {sM2}, {sTMP}')
    a(f's_cmp_eq_u32 {sM0}, {sRB}\ns_cselect_b32 {sTMP}, 1, 0\ns_xor_b32 {sRA}, {sRA}, {sTMP}')
    if LIGHT:
        a(f's_cmp_lg_u32 {sS}, 8\ns_cbranch_scc1 {LOOP}\ns_memtime s[98:99]\ns_mov_b32 s46, {sBUD}')
    a(f's_branch {LOOP}')
    a(f'{rd}:\ns_sub_u32 {sBUD}, {sBUD}, 64\ns_cbranch_scc0 {REDO}\ns_mov_b32 {sBUD}, 0\ns_branch {rd}b')
    for x in ool: x() if callable(x) else a(x)
    a(f'{XIT}:')
    if LIGHT:
        a(f's_memtime s[100:101]\ns_waitcnt lgkmcnt(0)\ns_sub_u32 s100, s100, s98\ns_sub_u32 s46, s46, {sBUD}\nv_mov_b32 v24, s100\nv_mov_b32 v25, s46')
        a(f's_lshl_b32 {sTMP}, {sL}, 5\ns_add_u32 {sTMP}, {sTMP}, {sH}\ns_lshl_b32 {sTMP}, {sTMP}, 2\ns_add_u32 {sTMP}, {sTMP}, {sW}\ns_lshl_b32 {sTMP}, {sTMP}, 3\ns_add_u32 {sTMP}, {sTMP}, {L.DBG:#x}')
        a(f's_mov_b64 exec, 1\nbuffer_store_dwordx2 v[24:25], {L2}, {WS}, {sTMP} offen')
    a('s_endpgm')

def gen_qkv(a):
    HB = 0; PK = 2 * 36864; PKS = 24576; KM = PK + 3 * PKS
    vA, vHD, vKM, vHR = 'v0', 'v1', 'v2', 'v3'
    sL, sH, sLB, sTMP, sB0, sPAR = 's11', 's12', 's13', 's14', 's15', 's16'
    sJ, sHS, sKV, sKVM, sO, sFKV, sFO, sARM, sNEED, sT2, sPW, sPR, sLBH, sC, sJA, sQO, sVO, sD, sFH, sW10, sDM, sFS, sFM = ['s%d' % i for i in range(52, 64)] + ['s%d' % i for i in range(17, 28)]
    MK = 64
    a('qkv:')
    a(f"""s_sub_u32 {sH}, {sX}, 2
    s_lshl_b32 {sH}, {sH}, 3
    s_and_b32 {sTMP}, {sT}, 7
    s_add_u32 {sH}, {sH}, {sTMP}
    s_lshr_b32 {sL}, {sT}, 4
    s_bfe_u32 {sPAR}, {sT}, 0x10003
    s_mul_i32 {sLB}, {sW}, 36864""")
    vTR, vo1, t0 = 'v20', 'v21', 'v24'
    mk_vTR(a, vTR, t0, sLB)
    bits(a, vo1, t0, [(0, 2, 4), (2, 4, 13)])
    a(f's_lshl_b32 {sB0}, {sH}, 8\ns_lshl_b32 {sTMP}, {sW}, 6\ns_add_u32 {sB0}, {sB0}, {sTMP}')
    pool = [('a', 8 * i) for i in range(32)] + [('v', 80 + 8 * i) for i in range(22)]
    W = {}; units = []
    for m in 'kvq':
        for kap in range(9):
            d = [pool.pop(0), pool.pop(0)]
            for T in range(2):
                for hh in range(2): W[(m, T, 2 * kap + hh)] = (d[T][0], d[T][1] + 4 * hh)
            units.append(({'q': WQ, 'k': WK, 'v': WV}[m], vo1, sB0, [(64 * kap + 16 * q) * 8192 for q in range(4)], d[0], d[1]))
    load_units(a, units, vTR, None, sLB, sTMP, None)
    initwait(a)
    rts(a, 30, None, 1)
    wf = lambda m, T, k: vr(W[(m, T, k)][1], 4, W[(m, T, k)][0])
    a(f's_and_b32 {sTMP}, {sW}, 1\ns_lshl_b32 {sTMP}, {sTMP}, 4\nv_and_b32 v24, 15, v0\nv_add_u32 v24, {sTMP}, v24\nv_lshrrev_b32 v25, 4, v0\nv_lshlrev_b32 v25, 2, v25\nv_sub_u32 v24, v24, v25')
    for kt in range(2):
        for r in range(4):
            a(f'v_cmp_le_i32 s[{MK + 8 * kt + 2 * r}:{MK + 8 * kt + 2 * r + 1}], {16 * kt + r}, v24')
    a(f'v_lshrrev_b32 {vHD}, 2, v0\nv_mul_u32_u24 {vHD}, 1152, {vHD}\nv_and_b32 v24, 3, v0\nv_lshlrev_b32 v24, 4, v24\nv_and_b32 v25, 32, v0\nv_xor_b32 v24, v24, v25\nv_add_u32 {vHD}, {vHD}, v24')
    bits(a, vHR, t0, [(0, 4, 6), (4, 2, 4)])
    a(f'v_and_b32 v24, 8, v0\nv_lshlrev_b32 v24, 2, v24\nv_xor_b32 {vHR}, {vHR}, v24')
    bits(a, vKM, t0, [(4, 2, 4), (2, 2, 7), (0, 1, 6)], KM)
    a(f'v_lshlrev_b32 {vA}, 4, v0')
    a(f's_mov_b32 {sC}, {CSC:#x}\ns_mov_b32 {sJ}, 0\ns_mov_b32 {sJA}, 0\ns_mov_b32 {sD}, {OPT.get("D", 2)}\ns_mov_b32 {sDM}, 0\ns_lshl_b32 {sW10}, {sW}, 10')
    a(f"""s_mul_i32 {sHS}, {sL}, {L.H2 - L.H1:#x}
    s_add_u32 {sHS}, {sHS}, {L.H1:#x}
    s_mul_i32 {sTMP}, {sPAR}, 36864
    s_add_u32 {sHS}, {sHS}, {sTMP}
    s_and_b32 {sT2}, {sW}, 1
    s_mul_i32 {sTMP}, {sT2}, 18432
    s_add_u32 {sHS}, {sHS}, {sTMP}
    s_lshl_b32 {sLBH}, {sT2}, 10
    s_lshl_b32 {sQO}, {sT2}, 12
    s_lshr_b32 {sT2}, {sW}, 1
    s_mul_i32 {sTMP}, {sT2}, 576
    s_add_u32 {sHS}, {sHS}, {sTMP}
    s_mul_i32 {sTMP}, {sT2}, 18432
    s_add_u32 {sLBH}, {sLBH}, {sTMP}
    s_lshl_b32 {sVO}, {sT2}, 12""")
    a(f"""s_lshl_b32 {sT2}, {sL}, 5
    s_add_u32 {sT2}, {sT2}, {sH}
    s_lshl_b32 {sTMP}, {sT2}, 6
    s_add_u32 {sTMP}, {sTMP}, {sPAR}
    s_lshl_b32 {sKV}, {sTMP}, 14
    s_add_u32 {sKV}, {sKV}, {L.KV:#x}
    s_lshl_b32 {sKVM}, {sTMP}, 12
    s_add_u32 {sKVM}, {sKVM}, {L.KVM:#x}
    s_add_u32 {sKVM}, {sKVM}, {sW10}
    s_mov_b32 {sARM}, {sKVM}
    s_lshl_b32 {sO}, {sTMP}, 13
    s_add_u32 {sO}, {sO}, {L.O:#x}
    s_lshl_b32 {sTMP}, {sT2}, 1
    s_add_u32 {sTMP}, {sTMP}, {sPAR}
    s_lshl_b32 {sFKV}, {sTMP}, 6
    s_add_u32 {sFKV}, {sFKV}, {sW}
    s_lshl_b32 {sFKV}, {sFKV}, 1
    s_add_u32 {sFKV}, {sFKV}, {L.FKV:#x}
    s_lshl_b32 {sTMP}, {sL}, 1
    s_add_u32 {sTMP}, {sTMP}, {sPAR}
    s_lshl_b32 {sTMP}, {sTMP}, 5
    s_add_u32 {sTMP}, {sTMP}, {sH}
    s_lshl_b32 {sFO}, {sTMP}, 5
    s_lshl_b32 {sFO}, {sFO}, 2
    s_add_u32 {sFO}, {sFO}, {L.FO:#x}
    s_lshl_b32 {sFH}, {sPAR}, 1
    s_and_b32 {sTMP}, {sW}, 1
    s_add_u32 {sFH}, {sFH}, {sTMP}
    s_cmp_eq_u32 {sL}, 0
    s_cselect_b32 {sFS}, 2048, 0
    s_cselect_b32 {sFM}, 2, 4
    s_cselect_b32 {sTMP}, 9, 11
    s_cselect_b32 {sT2}, 0, 0x4000
    s_lshl_b32 {sFH}, {sFH}, {sTMP}
    s_add_u32 {sFH}, {sFH}, {sT2}
    s_add_u32 {sFH}, {sFH}, {L.FH1:#x}
    s_cmp_eq_u32 {sW}, 0
    s_cselect_b32 s80, 1, 0
    s_mov_b32 s81, 0
    s_mov_b32 {sPW}, {PK}
    s_mov_b32 {sPR}, {PK}""")
    a(f's_add_u32 {sO}, {sO}, {sVO}\ns_lshr_b32 {sTMP}, {sQO}, 2\ns_add_u32 {sO}, {sO}, {sTMP}')
    a('s_barrier')
    LOOP, NOH, NOA, NOP_, NH2 = [a.lab(x) for x in ('ql', 'qnh', 'qna', 'qnp', 'qn2')]
    th, to = a.tok('h'), a.tok('o')
    def hdma():
        for i in range(9):
            a(f's_add_u32 m0, {sLBH}, {HB + i * 1984}')
            a(f'buffer_load_dwordx4 {vHD}, {WS}, {sHS} offen offset:{i * 64} sc1 lds', tok=th)
        a(f's_add_u32 {sHS}, {sHS}, {2 * 36864}\ns_add_u32 {sB0}, {sFH}, {sFS}\ns_and_b32 {sB0}, {sB0}, 0x3fff\ns_andn2_b32 {sFH}, {sFH}, 0x3fff\ns_or_b32 {sFH}, {sFH}, {sB0}')
        a(f's_add_u32 {sLBH}, {sLBH}, 36864\ns_cmp_ge_u32 {sLBH}, {2 * 36864}\ns_cselect_b32 {sB0}, {2 * 36864}, 0\ns_sub_u32 {sLBH}, {sLBH}, {sB0}')
    def flag(vt, val, so, short=False):
        a(f'v_mov_b32 v{vt}, {val}\ns_mov_b64 exec, 1\nbuffer_store_{"short" if short else "dword"} v{vt}, {vA}, {WS}, {so} offen sc1\ns_mov_b64 exec, -1')
    a(f'{LOOP}:')
    a(f's_cmp_lt_u32 {sJ}, {sD}\ns_cbranch_scc1 {NOA}')
    a(f'v_add_u32 v4, {sPR}, {vA}\nv_add_u32 v5, {sQO}, v4')
    for k in range(4): a(f'ds_read_b128 {vr(24 + 4 * k, 4)}, v5 offset:{k * 1024}')
    for k in range(8): a(f'ds_read_b128 {vr(40 + 4 * k, 4)}, v4 offset:{8192 + k * 1024}')
    a(f'v_add_u32 v5, {sVO}, v4\ns_add_u32 {sTMP}, {sW10}, {KM}\nv_add_u32 v6, {sTMP}, {vA}')
    a(f's_lshr_b32 {sTMP}, {sVO}, 2\ns_add_u32 {sTMP}, {sTMP}, {KM + 2048}\nv_lshrrev_b32 v7, 1, {vA}\nv_add_u32 v7, {sTMP}, v7')
    for kt in range(2):
        for k in range(4):
            a(f'{MF32} {vr(72 + 4 * kt, 4)}, {vr(40 + 16 * kt + 4 * k, 4)}, {vr(24 + 4 * k, 4)}, {"0" if k == 0 else vr(72 + 4 * kt, 4)}')
    for k in range(4): a(f'ds_read_b128 {vr(56 + 4 * k, 4)}, v5 offset:{16384 + k * 1024}')
    a('v_mov_b32 v44, 0xff800000')
    for r in range(4): a(f'v_mov_b32 v{48 + r}, 0x3f803f80')
    for i in range(8): a(f'v_cndmask_b32 v{72 + i}, v44, v{72 + i}, s[{MK + 2 * i}:{MK + 2 * i + 1}]')
    a('v_max3_f32 v45, v72, v73, v74\nv_max3_f32 v45, v45, v75, v76\nv_max3_f32 v45, v45, v77, v78\nv_max_f32 v45, v45, v79')
    lp, dn = a.lab('mp'), a.lab('md')
    a(f"""{lp}:
    v_max3_u32 v46, v12, v13, v14
    v_max_u32 v46, v46, v15
    v_cmp_eq_u32 vcc, -1, v46
    s_cbranch_vccz {dn}
    s_sleep {OPT.get('ks', 3)}
    buffer_load_dwordx4 v[12:15], {vA}, {WS}, {sKVM} offen sc1
    s_sub_u32 {sBUD}, {sBUD}, 1
    s_cbranch_scc0 {lp}
    s_mov_b32 {sBUD}, 0
    {dn}:
    ds_write_b128 v6, v[12:15]
    s_waitcnt lgkmcnt(0)
    s_barrier""")
    for k in range(4): a(f'ds_read_b128 {vr(8 + 4 * k, 4)}, {vKM} offset:{k * 512}')
    a('ds_read_b64 v[4:5], v7\nds_read_b64 v[6:7], v7 offset:512')
    for k in range(4):
        a(f'{MF32} v[40:43], {vr(8 + 4 * k, 4)}, {vr(24 + 4 * k, 4)}, {"0" if k == 0 else "v[40:43]"}')
    a('v_max3_f32 v45, v45, v40, v41')
    xreduce(a, 'v_max_f32', 'v45', 'v46')
    a(f'v_mul_f32 v45, {sC}, v45')
    sv = list(range(72, 80)) + [40, 41]
    for r in sv: a(f'v_fma_f32 v{r}, v{r}, {sC}, -v45')
    for r in sv: a(f'v_exp_f32 v{r}, v{r}')
    for i in range(4): a(f'v_cvt_pk_bf16_f32 v{8 + i}, v{72 + 2 * i}, v{73 + 2 * i}')
    a('v_cvt_pk_bf16_f32 v12, v40, v41\nv_mov_b32 v13, 0\nv_mov_b32 v14, 0\nv_cvt_pk_bf16_f32 v15, v40, v41')
    a(f'{MF32} v[52:55], v[48:51], v[8:11], 0')
    for e in range(4): a(f'{MF32} {vr(24 + 4 * e, 4)}, {vr(56 + 4 * e, 4)}, v[8:11], 0')
    a(f'{MF16} v[52:55], v[48:49], v[12:13], v[52:55]')
    for e in range(4): a(f'{MF16} {vr(24 + 4 * e, 4)}, {vr(4 + 2 * (e >> 1), 2)}, {vr(12 + 2 * (e & 1), 2)}, {vr(24 + 4 * e, 4)}')
    a(f's_add_u32 {sJA}, {sJA}, 1\ns_add_u32 {sKVM}, {sKVM}, 8192')
    a(f's_add_u32 {sPR}, {sPR}, {PKS}\ns_cmp_eq_u32 {sPR}, {PK + 3 * PKS}\ns_cselect_b32 {sPR}, {PK}, {sPR}')
    a('v_rcp_f32 v52, v52')
    for r in range(0, 16, 2): a(f'v_pk_mul_f32 {vr(24 + r, 2)}, {vr(24 + r, 2)}, v[52:53] op_sel_hi:[1,0]')
    for r in range(8): a(f'v_cvt_pk_bf16_f32 v{24 + r}, v{24 + 2 * r}, v{25 + 2 * r}')
    a(f'buffer_store_dwordx4 v[24:27], {vA}, {WS}, {sO} offen sc1\nbuffer_store_dwordx4 v[28:31], {vA}, {WS}, {sO} offen offset:2048 sc1', tok=to)
    a(f's_add_u32 {sO}, {sO}, 16384\nv_mov_b32 v12, -1')
    rts(a, 8, sJA, 1)
    a(f'{NOA}:')
    sk = a.lab('fo')
    a(f's_lshr_b32 {sTMP}, {sJ}, 5\ns_or_b32 {sTMP}, {sTMP}, {sL}\ns_cbranch_scc0 {sk}')
    a(f'v_mov_b32 v8, {sJA}\ns_waitcnt vmcnt(0)\ns_barrier\ns_mov_b64 exec, s[80:81]\nbuffer_store_dword v8, {vA}, {WS}, {sFO} offen sc1\ns_mov_b64 exec, -1')
    a(f's_cmp_ge_u32 {sJ}, 32\ns_cbranch_scc1 {NOP_}')
    a(f'{sk}:\ns_cmp_eq_u32 {sDM}, 1\ns_cbranch_scc1 {NH2}')
    a(f'v_bfe_u32 v9, {vA}, 4, {sFM}\nv_lshlrev_b32 v9, 7, v9\ns_add_u32 {sNEED}, {sJ}, 1')
    poll_flag(a, 'v8', 'v9', sFH, sNEED, sleep=3)
    hdma()
    rts(a, 8, sJ, 70)
    a(f's_waitcnt vmcnt(0)\n{NH2}:')
    rts(a, 8, sJ, 71)
    tkv = a.tok('kv')
    a('v_mov_b64 v[4:5], -1\nv_mov_b64 v[6:7], -1')
    a(f's_mov_b32 {sDM}, 0\ns_add_u32 {sNEED}, {sJ}, 2\ns_barrier')
    AK, AV, AQ_, HR = 8, 24, 40, 56
    hs = lambda k, rt: vr(HR + 8 * (k % 3) + 4 * rt, 4)
    rdH = lambda k, rt: f'ds_read_b128 {hs(k, rt)}, {vHR} offset:{HB + ((k % 18) * 2 + rt) * 1024}'
    st = Stream(a)
    st.add(-1, 'D', *[rdH(k, rt) for k in range(3) for rt in range(2)])
    for k in range(18):
        for rt in range(2):
            for T in range(2):
                d = vr(AK + 8 * rt + 4 * T, 4)
                st.mf(f'{MF32} {d}, {wf("k", T, k)}, {hs(k, rt)}, {"0" if k == 0 else d}')
            for T in range(2):
                d = vr(AV + 8 * T + 4 * rt, 4)
                p = st.mf(f'{MF32} {d}, {hs(k, rt)}, {wf("v", T, k)}, {"0" if k == 0 else d}')
            st.add(p, 'D', rdH(k + 3, rt))
    for k in range(18):
        for rt in range(2):
            for T in range(2):
                d = vr(AQ_ + 8 * rt + 4 * T, 4)
                p = st.mf(f'{MF32} {d}, {wf("q", T, k)}, {hs(k, rt)}, {"0" if k == 0 else d}')
            if k + 3 < 18: st.add(p, 'D', rdH(k + 3, rt))
    st.add(44, 'V', f'v_mov_b32 v{AQ_}, {sJA}')
    st.add(45, 'X', lambda: a.wait(to), 's_barrier', 's_mov_b64 exec, s[80:81]', f'buffer_store_dword v{AQ_}, {vA}, {WS}, {sFO} offen sc1', 's_mov_b64 exec, -1')
    st.add(49, 'D', f'buffer_store_dwordx4 v[4:7], {vA}, {WS}, {sARM} offen sc1')
    st.add(53, 'S', f's_add_u32 {sARM}, {sARM}, 8192')
    st.add(136, 'S', f's_add_u32 {sT2}, {sW10}, {sPW}'); st.add(137, 'V', f'v_add_u32 v4, {sT2}, {vA}')
    st.add(138, 'S', f's_add_u32 {sT2}, {sT2}, {sW10}'); st.add(140, 'V', f'v_add_u32 v5, {sT2}, {vA}')
    st.add(141, 'S', f's_add_u32 {sT2}, {sW10}, {sKV}'); st.add(142, 'S', f's_add_u32 {sB0}, {sT2}, 4096')
    st.add(144, 'S', f's_add_u32 {sTMP}, {sB0}, {sW10}'); st.add(146, 'S', f's_add_u32 {sTMP}, {sTMP}, 4096')
    pos = 146
    for b in range(4):
        base = AK + 8 * b
        for r in range(4): st.add(pos + (r >> 1) * 2, 'V', f'v_cvt_pk_bf16_f32 v{base + r}, v{base + 2 * r}, v{base + 2 * r + 1}')
        if b < 2:
            st.add(pos + 4, 'D', lambda base=base, b=b: a(f'buffer_store_dwordx4 {vr(base, 4)}, {vA}, {WS}, {[sT2, sB0][b]} offen sc1', tok=tkv))
            st.add(pos + 24, 'D', f'ds_write_b128 v4, {vr(base, 4)} offset:{8192 + b * 4096}')
        else:
            st.add(pos + 4, 'D', lambda base=base, b=b: a(f'buffer_store_dwordx4 {vr(base, 4)}, {vA}, {WS}, {sTMP} offen offset:{(b - 2) * 1024} sc1', tok=tkv))
            st.add(pos + 24, 'D', f'ds_write_b128 v5, {vr(base, 4)} offset:{16384 + (b - 2) * 1024}')
        pos += 6
    st.add(210, 'S', f's_add_u32 {sT2}, {sJ}, 1')
    pf = a.lab('pf')
    st.add(56, 'V', f'v_bfe_u32 v7, {vA}, 4, {sFM}', 'v_lshlrev_b32 v7, 7, v7'); st.add(57, 'D', f'buffer_load_dword v7, v7, {WS}, {sFH} offen sc1')
    st.add(112, 'S', lambda: a.need('v7')); st.add(112, 'V', f'v_cmp_gt_u32 vcc, {sNEED}, v7')
    st.add(114, 'S', f's_cbranch_vccz {pf}', f'{pf}b:')
    st.add(196, 'D', f'buffer_load_dwordx4 v[12:15], {vA}, {WS}, {sKVM} offen sc1')
    st.emit()
    a.wait(tkv)
    flag(6, sT2, sFKV, True)
    for b in range(2):
        base = AQ_ + 8 * b
        for r in range(4): a(f'v_cvt_pk_bf16_f32 v{base + r}, v{base + 2 * r}, v{base + 2 * r + 1}')
        a(f'ds_write_b128 v4, {vr(base, 4)} offset:{b * 4096}')
    rts(a, 8, sJ, 2)
    a(f's_add_u32 {sKV}, {sKV}, 32768\ns_and_b32 {sTMP}, {sJ}, 1\ns_mul_i32 {sTMP}, {sTMP}, {-2 * 36864}\ns_add_u32 {sTMP}, {sTMP}, 36864\nv_add_u32 {vHR}, {sTMP}, {vHR}')
    a(f's_add_u32 {sPW}, {sPW}, {PKS}\ns_cmp_eq_u32 {sPW}, {PK + 3 * PKS}\ns_cselect_b32 {sPW}, {PK}, {sPW}')
    a(f'{NOP_}:\ns_waitcnt lgkmcnt(0)\ns_barrier')
    a(f's_add_u32 {sJ}, {sJ}, 1\ns_cmp_lt_u32 {sJA}, 32\ns_cbranch_scc1 {LOOP}')
    a(f's_endpgm\n{pf}:\ns_cmp_ge_u32 {sJ}, 31\ns_cbranch_scc1 {pf}b')
    hdma()
    a(f's_mov_b32 {sDM}, 1\ns_branch {pf}b')

def gen_op(a):
    vA, vST, TA, vB = 'v0', 'v1', 'v2', 'v3'
    sL, sKG, sLB, sTMP, sB0, sCG = 's11', 's12', 's13', 's14', 's15', 's16'
    sS, sO, sFO, sFP, sPP, sT2, sBUF, sPAR, sT3, sT4 = ['s%d' % i for i in range(52, 62)]
    a('op:')
    a(f"""s_sub_u32 {sPAR}, {sX}, 6
    s_cmp_ge_u32 {sT}, 12
    s_cselect_b32 {sL}, 1, 0
    s_mul_i32 {sTMP}, {sL}, 12
    s_sub_u32 {sT2}, {sT}, {sTMP}
    s_mul_i32 {sKG}, {sT2}, 43
    s_lshr_b32 {sKG}, {sKG}, 7
    s_mul_i32 {sTMP}, {sKG}, 3
    s_sub_u32 {sCG}, {sT2}, {sTMP}
    s_mul_i32 {sLB}, {sW}, 36864""")
    vTR, vo1, t0 = 'v20', 'v21', 'v24'
    mk_vTR(a, vTR, t0, sLB)
    bits(a, vo1, t0, [(4, 1, 4), (5, 1, 2), (2, 2, 0)])
    a(f'v_mul_u32_u24 {vo1}, 1152, {vo1}\nv_and_b32 {t0}, 3, v0\nv_lshl_add_u32 {vo1}, {t0}, 4, {vo1}')
    a(f's_mul_i32 {sB0}, {sKG}, {1024 * 1152}\ns_mul_i32 {sTMP}, {sCG}, 384\ns_add_u32 {sB0}, {sB0}, {sTMP}\ns_mul_i32 {sTMP}, {sW}, 96\ns_add_u32 {sB0}, {sB0}, {sTMP}')
    pool = [('a', 8 * i) for i in range(32)] + [('v', 128 + 8 * i) for i in range(16)]
    W = {}; units = []
    for k64 in range(16):
        for pr in range(2):
            d = []
            for T in (2 * pr, 2 * pr + 1):
                if T == 3: d.append(None); continue
                x = pool.pop(0); d.append(x)
                for hh in range(2): W[(T, 2 * k64 + hh)] = vr(x[1] + 4 * hh, 4, x[0])
            units.append((WO, vo1, sB0, [(64 * k64 + 32 * (q >> 1) + 8 * (q & 1)) * 1152 + 64 * pr for q in range(4)], d[0], d[1]))
    load_units(a, units, vTR, None, sLB, sTMP, None)
    initwait(a)
    rts(a, 30, None, 1)
    a(f'v_lshrrev_b32 {vST}, 4, v0\nv_mul_u32_u24 {vST}, 3072, {vST}\nv_and_b32 v24, 15, v0\nv_lshl_add_u32 {vST}, v24, 2, {vST}')
    bits(a, TA, t0, [(5, 1, 9)])
    a(f'v_lshlrev_b32 {vA}, 4, v0')
    a(f"""s_mov_b32 {sS}, 0
    s_lshl_b32 {sT2}, {sKG}, 3
    s_add_u32 {sT2}, {sT2}, {sW}
    s_lshl_b32 {sTMP}, {sL}, 5
    s_add_u32 {sTMP}, {sTMP}, {sT2}
    s_lshl_b32 {sTMP}, {sTMP}, 6
    s_add_u32 {sTMP}, {sTMP}, {sPAR}
    s_lshl_b32 {sO}, {sTMP}, 13
    s_add_u32 {sO}, {sO}, {L.O:#x}
    s_lshl_b32 {sTMP}, {sL}, 1
    s_add_u32 {sTMP}, {sTMP}, {sPAR}
    s_lshl_b32 {sTMP}, {sTMP}, 5
    s_add_u32 {sTMP}, {sTMP}, {sT2}
    s_lshl_b32 {sFO}, {sTMP}, 7
    s_add_u32 {sFO}, {sFO}, {L.FO:#x}
    s_lshl_b32 {sFP}, {sT}, 2
    s_add_u32 {sFP}, {sFP}, {sW}
    s_lshl_b32 {sFP}, {sFP}, 1
    s_lshl_b32 {sTMP}, {sL}, 5
    s_add_u32 {sFP}, {sFP}, {sTMP}
    s_lshl_b32 {sTMP}, {sPAR}, 8
    s_add_u32 {sFP}, {sFP}, {sTMP}
    s_add_u32 {sFP}, {sFP}, {L.FP:#x}
    s_mul_i32 {sPP}, {sPAR}, 24
    s_add_u32 {sPP}, {sPP}, {sT}
    s_mul_i32 {sPP}, {sPP}, {L.PP_C:#x}
    s_mul_i32 {sTMP}, {sW}, 192
    s_add_u32 {sPP}, {sPP}, {sTMP}
    s_add_u32 {sPP}, {sPP}, {L.PP:#x}
    s_mov_b32 {sBUF}, 0
    s_barrier""")
    LOOP = a.lab('ol')
    a(f'{LOOP}:')
    a(f's_add_u32 {sS}, {sS}, 1\ns_lshl_b32 {sT2}, {sW}, 13\ns_add_u32 {sT2}, {sT2}, {sBUF}\ns_add_u32 {sTMP}, {sO}, 4096\ns_add_u32 {sT3}, {sO}, {4 * 64 * 8192:#x}\ns_add_u32 {sT4}, {sT3}, 4096')
    a(f'v_add_u32 {vB}, {sBUF}, {vA}')
    poll_flag(a, 'v8', TA, sFO, sS, sleep=2)
    t1, t2 = a.tok('o'), a.tok('o')
    for i in range(16):
        if i % 4 == 0: a(f's_add_u32 m0, {sT2}, {(i // 8) * 32768 + ((i // 4) & 1) * 4096}')
        a(f'buffer_load_dwordx4 {vA}, {WS}, {[sO, sTMP, sT3, sT4][i // 4]} offen offset:{(i % 4) * 1024} sc1 lds', tok=t1 if i < 8 else t2)
    rts(a, 8, sS, 0)
    a.wait(t1)
    a('s_barrier')
    AC, HR = 8, 32
    hs = lambda k, rt: vr(HR + 8 * (k % 3) + 4 * rt, 4)
    rd = lambda k, rt: f'ds_read_b128 {hs(k, rt)}, {vB} offset:{(k * 2 + rt) * 1024}'
    st = Stream(a)
    st.add(-1, 'D', *[rd(k, rt) for k in range(3) for rt in range(2)])
    for k in range(32):
        for rt in range(2):
            for T in range(3):
                d = vr(AC + 12 * rt + 4 * T, 4)
                p = st.mf(f'{MF32} {d}, {hs(k, rt)}, {W[(T, k)]}, {"0" if k == 0 else d}')
            if k + 3 < 32: st.add(p, 'D', rd(k + 3, rt))
    st.add(13 * 6, 'X', lambda: a.wait(t2), 's_barrier')
    st.add(100, 'S', f's_add_u32 {sTMP}, {sPP}, 12288')
    st.emit()
    for rt in range(2):
        for T in range(3):
            for r in range(4):
                a(f'buffer_store_dword v{AC + 12 * rt + 4 * T + r}, {vST}, {WS}, {[sPP, sTMP][rt]} offen offset:{r * 768 + T * 64}')
    a(f'v_mov_b32 v4, {sS}')
    a(f's_add_u32 {sO}, {sO}, 16384\ns_add_u32 {sPP}, {sPP}, 24576\ns_xor_b32 {sBUF}, {sBUF}, 65536')
    a(f's_waitcnt vmcnt(0)\ns_mov_b64 exec, 1\nbuffer_store_short v4, {vA}, {WS}, {sFP} offen\ns_mov_b64 exec, -1')
    rts(a, 8, sS, 1)
    a(f's_cmp_lt_u32 {sS}, 32\ns_cbranch_scc1 {LOOP}')
    a('s_endpgm')

def wsum2(a, x, y, t, u):
    for r in (8, 4, 2, 1):
        a(f'v_add_f32_dpp {x}, {x}, {x} row_ror:{r} {DPPF}\nv_add_f32_dpp {y}, {y}, {y} row_ror:{r} {DPPF}')
    for sw in ('v_permlane16_swap_b32', 'v_permlane32_swap_b32'):
        a(f'v_mov_b32 {t}, {x}\nv_mov_b32 {u}, {y}\n{sw} {t}, {x}\n{sw} {u}, {y}\nv_add_f32 {x}, {x}, {t}\nv_add_f32 {y}, {y}, {u}')

def pack(a, pk, X):
    for i in range(6): a(f'v_cvt_pk_bf16_f32 v{pk + i}, v{X + 2 * i}, v{X + 2 * i + 1}')
def unpack(a, dst, src, n):
    for i in range(n):
        a(f'v_lshlrev_b32 v{dst + 2 * i}, 16, v{src + i}\nv_and_b32 v{dst + 2 * i + 1}, 0xffff0000, v{src + i}')
def rnd1(a, x):
    a(f'v_cvt_pk_bf16_f32 {x}, {x}, {x}\nv_and_b32 {x}, 0xffff0000, {x}')
def pk(a, op, d, x, y, z=None, n=6):
    for i in range(n):
        ops, hi = [], []
        for o in (x, y, z):
            if o is None: continue
            if isinstance(o, tuple): ops.append(vr(o[1], 2)); hi.append(0)
            else: ops.append(vr(o + 2 * i, 2)); hi.append(1)
        a(f'v_pk_{op}_f32 {vr(d + 2 * i, 2)}, ' + ', '.join(ops) + ('' if all(hi) else ' op_sel_hi:[' + ','.join(map(str, hi)) + ']'))

def ln_stats(a, X, Q, T, live, sc):
    m, r, t, u = f'v{T}', f'v{T + 2}', f'v{T + 4}', f'v{T + 5}'
    a(f'v_readfirstlane_b32 {sc}, v{X}\nv_sub_f32 {m}, 0, {sc}' if False else f'v_readfirstlane_b32 {sc}, v{X}\ns_xor_b32 {sc}, {sc}, 0x80000000\nv_mov_b32 {m}, {sc}')
    pk(a, 'add', Q, X, ('b', T))
    a(f'v_pk_mul_f32 {vr(T + 2, 2)}, {vr(Q, 2)}, {vr(Q, 2)}\nv_pk_add_f32 {vr(T, 2)}, {vr(Q, 2)}, {vr(Q + 2, 2)}')
    for i in range(1, 6):
        a(f'v_pk_fma_f32 {vr(T + 2, 2)}, {vr(Q + 2 * i, 2)}, {vr(Q + 2 * i, 2)}, {vr(T + 2, 2)}')
        if i > 1: a(f'v_pk_add_f32 {vr(T, 2)}, {vr(T, 2)}, {vr(Q + 2 * i, 2)}')
    a(f'v_add_f32 {m}, {m}, v{T + 1}\nv_add_f32 {r}, {r}, v{T + 3}\nv_cndmask_b32 {m}, 0, {m}, {live}\nv_cndmask_b32 {r}, 0, {r}, {live}')
    wsum2(a, m, r, t, u)
    a(f'v_mul_f32 {m}, {fbits(1 / 576):#x}, {m}\nv_mul_f32 {r}, {fbits(1 / 576):#x}, {r}\nv_fma_f32 {r}, -{m}, {m}, {r}\nv_max_f32 {r}, 0, {r}\nv_sub_f32 {m}, {sc}, {m}')
    rnd1(a, r); rnd1(a, m)
    a(f'v_add_f32 {r}, {fbits(1e-5):#x}, {r}')
    rnd1(a, r)
    a(f'v_sqrt_f32 {r}, {r}')
    rnd1(a, r)
    a(f'v_rcp_f32 {r}, {r}')

def a_layer(a, X, YP, live, sc, store_x, store_h):
    Q, PKR, T, YF = X + 12, X + 24, X + 30, X + 36
    unpack(a, YF, YP, 6)
    ln_stats(a, X, Q, T, live, sc)
    pk(a, 'add', Q, X, ('b', T))
    pk(a, 'mul', YF, YF, ('b', T + 2))
    pk(a, 'fma', X, Q, YF, X)
    pack(a, YF, X); unpack(a, X, YF, 6)
    store_x(YF)
    ln_stats(a, X, Q, T, live, sc)
    pk(a, 'add', Q, X, ('b', T))
    pack(a, PKR, Q); unpack(a, Q, PKR, 6)
    pk(a, 'mul', Q, Q, ('b', T + 2))
    pack(a, PKR, Q)
    store_h(PKR)

def lane48(a, v16, v8):
    a(f"""s_mov_b32 s24, -1
    s_mov_b32 s25, 0xffff
    v_lshlrev_b32 {v16}, 4, v0
    v_lshlrev_b32 {v8}, 3, v0
    v_mov_b32 v4, 0x80000000
    v_cndmask_b32 {v16}, v4, {v16}, s[24:25]
    v_cndmask_b32 {v8}, v4, {v8}, s[24:25]""")

def gen_red(a):
    v16, v8, vF = 'v1', 'v2', 'v3'
    sPAR, sROW, sTMP = 's11', 's12', 's14'
    sJ0, sJ1, sPP, sFP, sRO, sT2, sFH, sT3, sJ = ['s%d' % i for i in range(52, 61)]
    a('red:')
    a(f"""s_sub_u32 {sPAR}, {sX}, 6
    s_sub_u32 {sROW}, {sT}, 24
    s_lshl_b32 {sROW}, {sROW}, 2
    s_add_u32 {sROW}, {sROW}, {sW}
    s_mov_b32 {sJ0}, 0
    s_mov_b32 {sJ1}, 0
    s_mul_i32 {sPP}, {sPAR}, {24 * L.PP_C:#x}
    s_mul_i32 {sTMP}, {sROW}, 768
    s_add_u32 {sPP}, {sPP}, {sTMP}
    s_add_u32 {sPP}, {sPP}, {L.PP:#x}
    s_lshl_b32 {sFP}, {sPAR}, 8
    s_add_u32 {sFP}, {sFP}, {L.FP:#x}
    s_lshl_b32 {sTMP}, {sPAR}, 5
    s_add_u32 {sTMP}, {sTMP}, {sROW}
    s_mul_i32 {sRO}, {sTMP}, 1152
    s_lshl_b32 {sFH}, {sTMP}, 7
    s_add_u32 {sFH}, {sFH}, {L.FH1 + 0x4000:#x}""")
    initwait(a)
    lane48(a, v16, v8)
    a(f'v_lshlrev_b32 {vF}, 1, v0')
    LOOP, J0, J1, END = a.lab('rl'), a.lab('r0'), a.lab('r1'), a.lab('re')
    a(f"""{LOOP}:
    s_add_u32 {sTMP}, {sJ0}, {sJ1}
    s_cmp_ge_u32 {sTMP}, 64
    s_cbranch_scc1 {END}
    buffer_load_ushort v4, {vF}, {WS}, {sFP} offen sc1
    buffer_load_ushort v5, {vF}, {WS}, {sFP} offen offset:128 sc1
    v_cmp_ge_u32 vcc, {sJ0}, v4
    s_and_b64 vcc, vcc, s[24:25]
    s_cbranch_vccz {J0}
    v_cmp_ge_u32 vcc, {sJ1}, v5
    s_and_b64 vcc, vcc, s[24:25]
    s_cbranch_vccz {J1}
    s_sub_u32 {sBUD}, {sBUD}, 1
    s_cbranch_scc0 {LOOP}
    {END}:
    s_endpgm""")
    PB, X = 100, 20
    def front(l, sj):
        rts(a, 8, sj, 2 + 64 * l)
        a(f's_mul_i32 {sT3}, {sj}, 24576\ns_add_u32 {sT3}, {sT3}, {sPP}\ns_mul_i32 {sJ}, {sj}, {2 * 36864}\ns_add_u32 {sJ}, {sJ}, {sRO}')
        for kg in range(4):
            for cg in range(3):
                a(f's_add_u32 {sTMP}, {sT3}, {(12 * l + kg * 3 + cg) * L.PP_C:#x}')
                a(f'buffer_load_dwordx4 {vr(PB + 12 * kg + 4 * cg, 4)}, {v16}, {WS}, {sTMP} offen sc1')
        a(f's_add_u32 {sTMP}, {sJ}, {[L.X1, L.X2][l]:#x}')
        for i in range(3): a(f'buffer_load_dwordx2 {vr(4 + 2 * i, 2)}, {v8}, {WS}, {sTMP} offen offset:{384 * i} sc1')
        if l == 0:
            a(f's_add_u32 {sT2}, {sJ}, {L.Y:#x}')
            for i in range(3): a(f'buffer_load_dwordx2 {vr(10 + 2 * i, 2)}, {v8}, {WS}, {sT2} offen offset:{384 * i} sc1')
        a(f's_add_u32 {sj}, {sj}, 1')
        pk(a, 'add', PB, PB, PB + 12); pk(a, 'add', PB + 24, PB + 24, PB + 36); pk(a, 'add', PB, PB, PB + 24)
        pack(a, PB + 12, PB); unpack(a, PB, PB + 12, 6)
        unpack(a, X, 4, 6)
        pk(a, 'add', X, X, PB)
        pack(a, 4, X)
    a(f'{J0}:')
    front(0, sJ0)
    unpack(a, X, 4, 6)
    def st(base):
        def f(r):
            a(f's_add_u32 {sTMP}, {sJ}, {base:#x}')
            for i in range(3): a(f'buffer_store_dwordx2 {vr(r + 2 * i, 2)}, {v8}, {WS}, {sTMP} offen offset:{384 * i} sc1')
        return f
    a_layer(a, X, 10, 's[24:25]', sT2, st(L.X2), st(L.H2))
    a(f'v_mov_b32 v4, {sJ0}\ns_waitcnt vmcnt(0)\ns_mov_b64 exec, 1\nbuffer_store_dword v4, {vF}, {WS}, {sFH} offen sc1\ns_mov_b64 exec, -1')
    rts(a, 8, sJ0, 1)
    a(f's_branch {LOOP}')
    a(f'{J1}:')
    front(1, sJ1)
    for i in range(3): a(f'buffer_store_dwordx2 {vr(4 + 2 * i, 2)}, {v8}, {OUT}, {sJ} offen offset:{384 * i}')
    rts(a, 8, sJ1, 65)
    a(f's_branch {LOOP}')

def gen_mega(a):
    a(f'.p2align 8\n{NAME}_kernel:')
    a('s_cmp_ge_u32 s2, 256\ns_cbranch_scc1 .mega_end')
    a('s_load_dwordx16 s[16:31], s[0:1], 64')
    a(f'v_lshrrev_b32 v1, 6, v0\nv_and_b32 v0, 63, v0\nv_readfirstlane_b32 {sW}, v1')
    a(f's_getreg_b32 {sX}, hwreg(HW_REG_XCC_ID)\ns_and_b32 {sX}, {sX}, 7\ns_mov_b32 {sBUD}, 200000')
    a('s_waitcnt lgkmcnt(0)')
    srd(a, 4, 30, L.WS_BYTES)
    for d, b in ((32, 16), (36, 18), (40, 20), (44, 22)): srd(a, d, b, 4718592)
    srd(a, 48, 26, 2359296)
    a(f'v_mov_b32 v4, 0\ns_cmp_lg_u32 {sW}, 0\ns_cbranch_scc1 .tk')
    a(f's_cmp_lt_u32 s2, 32\ns_cselect_b32 s12, -1, 0\nv_and_b32 v5, 31, v0\nv_cmp_gt_u32 vcc, {2 if "q" in ROLES else 0}, v5\nv_mov_b32 v5, s12\nv_cndmask_b32 v5, v5, v4, vcc')
    a(f'v_lshlrev_b32 v6, 2, v0\ns_lshl_b32 s12, s2, 9\nbuffer_store_dword v5, v6, {WS}, s12 offen sc1\nbuffer_store_dword v5, v6, {WS}, s12 offen offset:256 sc1')
    a(f's_lshl_b32 s11, {sX}, 5\nv_mov_b32 v1, s11\nv_mov_b32 v2, 1\ns_mov_b64 exec, 1')
    a('global_atomic_add v3, v1, v2, s[28:29] sc0 sc1\nds_write_b32 v4, v3')
    a('global_atomic_add v1, v2, s[28:29] offset:4 sc1\ns_mov_b64 exec, -1')
    a('.tk:\ns_waitcnt lgkmcnt(0)\ns_barrier\nds_read_b32 v3, v4')
    a(f'v_readfirstlane_b32 {sT}, v3\ns_barrier')
    a(f's_cmp_ge_u32 {sT}, 32\ns_cbranch_scc1 .mega_end')
    e = '.mega_end'
    rts(a, 8, None, 0)
    warm(a)
    a(f's_cmp_lt_u32 {sX}, 2\ns_cbranch_scc1 {"chain" if "c" in ROLES else e}')
    if 'q' in ROLES:
        a(f"""s_sub_u32 s11, {sX}, 6
        s_lshl_b32 s11, s11, 5
        s_add_u32 s11, s11, {sT}
        s_add_u32 s80, s11, 80
        s_add_u32 s81, s11, 64
        s_cmp_ge_u32 {sX}, 6
        s_cbranch_scc1 conv
        s_sub_u32 s11, {sX}, 2
        s_mul_i32 s80, s11, 20
        s_add_u32 s80, s80, {sT}
        s_sub_u32 s80, s80, 12
        s_lshl_b32 s81, s11, 4
        s_add_u32 s81, s81, {sT}
        s_sub_u32 s81, s81, 16
        s_cmp_lt_u32 {sT}, 16
        s_cselect_b32 s81, -1, s81
        s_cmp_ge_u32 {sT}, 12
        s_cbranch_scc1 conv
        roles:""")
        a(f's_cmp_lt_u32 {sX}, 6\ns_cbranch_scc1 qkv')
        a(f's_cmp_lt_u32 {sT}, 24\ns_cbranch_scc1 op')
        a('s_branch red')
    a('.mega_end:\ns_endpgm')
    if 'c' in ROLES: gen_chain(a)
    if 'q' in ROLES:
        gen_conv(a); gen_qkv(a); gen_op(a); gen_red(a)

MF3232 = 'v_mfma_f32_32x32x16_bf16'
def gen_conv(a):
    KVR = 0; HC = 32768; EX = HC
    sU, sJ = 's80', 's81'
    SK, SV, SH = 's[84:87]', 's[88:91]', 's[92:95]'
    TID = 'v90'
    a('conv:')
    a('s_load_dwordx8 s[16:23], s[0:1], 8\ns_load_dwordx2 s[24:25], s[0:1], 40\ns_load_dwordx2 s[26:27], s[0:1], 0')
    a(f's_lshl_b32 s11, {sW}, 6\nv_add_u32 {TID}, s11, v0')
    a('s_waitcnt lgkmcnt(0)')
    srd(a, 84, 16, 2359296)
    srd(a, 88, 18, 2359296)
    a(f's_lshl_b32 s13, {sU}, 2\ns_add_u32 s13, s13, {sW}\ns_lshl_b32 s14, s13, 12\ns_add_u32 s22, s22, s14\ns_addc_u32 s23, s23, 0')
    srd(a, 92, 22, 4096)
    a('s_lshr_b32 s14, s13, 1\ns_lshl_b32 s14, s14, 2\ns_add_u32 s24, s24, s14\ns_addc_u32 s25, s25, 0\ns_load_dword s60, s[24:25], 0')
    def divmod144(q, r, x):
        a(f'v_mul_u32_u24 {q}, 58255, {x}\nv_lshrrev_b32 {q}, 23, {q}\nv_mul_u32_u24 {r}, 144, {q}\nv_sub_u32 {r}, {x}, {r}')
    assert all((i * 58255) >> 23 == i // 144 for i in range(36864))
    a(f's_lshl_b32 s14, {sU}, 8\nv_add_u32 v4, s14, {TID}')
    divmod144('v2', 'v3', 'v4')
    a('v_lshlrev_b32 v4, 5, v3\nv_mul_u32_u24 v2, 9216, v2\nv_lshl_add_u32 v2, v3, 3, v2\nv_subrev_u32 v1, 3456, v2\nv_add_u32 v3, 4608, v2')
    srd(a, 52, 20, 4608)
    a('buffer_load_dwordx4 v[76:79], v4, s[52:55], 0 offen\nbuffer_load_dwordx4 v[80:83], v4, s[52:55], 0 offen offset:16')
    KB, VB = 10, 32
    for r in range(11):
        vo, im = ('v1', r * 1152) if r < 3 else (('v2', (r - 3) * 1152) if r < 7 else ('v3', (r - 7) * 1152))
        a(f'buffer_load_dwordx2 {vr(KB + 2 * r, 2)}, {vo}, {SK}, 0 offen offset:{im}')
    for r in range(8):
        vo, im = ('v2', r * 1152) if r < 4 else ('v3', (r - 4) * 1152)
        a(f'buffer_load_dwordx2 {vr(VB + 2 * r, 2)}, {vo}, {SV}, 0 offen offset:{im}')
    a(f'v_lshlrev_b32 v5, 4, v0\ns_mul_i32 s11, {sW}, 17408\ns_add_u32 s11, s11, {HC}')
    th = a.tok('h')
    for i in range(17):
        c0 = (64 * i) // 260; thr = 260 * (c0 + 1) - 64 * i
        a(f'v_add_u32 v6, {(1024 * i - 62 - 4158 * c0) & 0xffffffff:#x}, v5')
        if thr < 64:
            a(f'v_subrev_u32 v7, 4158, v6\nv_cmp_le_u32 vcc, {thr}, v0\nv_cndmask_b32 v6, v6, v7, vcc')
        a(f's_add_u32 m0, s11, {i * 1024}')
        a(f'buffer_load_dwordx4 v6, {SH}, 0 offen lds', tok=th)
    a('v_bfe_u32 v6, v0, 3, 2\nv_and_b32 v7, 7, v0\nv_add_u32 v8, v6, v7\nv_subrev_u32 v8, 7, v8\nv_lshlrev_b32 v8, 1, v8')
    a(f'buffer_load_ushort v9, v8, {SH}, 0 offen')
    a('v_mul_u32_u24 v6, 4160, v6\nv_lshl_add_u32 v6, v7, 1, v6\nv_add_u32 v8, s11, v6')
    a(f's_lshl_b32 s12, {sW}, 13')
    a('s_waitcnt lgkmcnt(0)')
    a('s_lshl_b32 s61, s60, 16\ns_and_b32 s60, s60, 0xffff0000\ns_bitcmp1_b32 s13, 0\ns_cselect_b32 s60, s60, s61')
    a('v_lshlrev_b32 v7, 6, v0\nv_add_u32 v7, s12, v7\nv_add_u32 v6, s12, v5')
    KF, AC, SW = 52, 64, 84
    for ch in range(4):
        un = (lambda d, s: f'v_lshlrev_b32 v{d}, 16, v{s}') if ch % 2 == 0 else (lambda d, s: f'v_and_b32 v{d}, 0xffff0000, v{s}')
        unpack(a, SW, 76 + 2 * ch, 2)
        for r in range(11): a(un(KF + r, KB + 2 * r + ch // 2))
        for r in range(8):
            a(f'v_mul_f32 v{AC + r}, v{SW + 3}, v{KF + r}')
            for j in range(1, 4): a(f'v_fmac_f32 v{AC + r}, v{SW + 3 - j}, v{KF + r + j}')
        for r in range(8): a(un(KF + r, VB + 2 * r + ch // 2))
        pk(a, 'mul', AC, AC, KF, n=4)
        for i in range(4): a(f'v_cvt_pk_bf16_f32 v{72 + i}, v{AC + 7 - 2 * i}, v{AC + 6 - 2 * i}')
        a(f'ds_write_b128 v7, v[72:75] offset:{KVR + ch * 16}')
    for j in range(4): a(f'ds_read_b128 {vr(16 + 4 * j, 4)}, v6 offset:{KVR + j * 1024}')
    a(f's_lshl_b32 s14, {sU}, 2\ns_add_u32 s14, s14, {sW}\ns_lshl_b32 s14, s14, 6\nv_lshrrev_b32 v4, 2, v0\nv_add_u32 v4, s14, v4\nv_and_b32 v3, 3, v0\nv_lshlrev_b32 v3, 4, v3\ns_mov_b32 s14, {L.KT:#x}')
    for j in range(4):
        divmod144('v1', 'v2', 'v4')
        a(f'v_lshl_add_u32 v1, v1, 6, v3\nv_lshl_add_u32 v1, v2, 14, v1\nv_add_u32 v4, 16, v4')
        a(f'buffer_store_dwordx4 {vr(16 + 4 * j, 4)}, v1, {WS}, s14 offen sc1')
    def allflag(base):
        sk, lp = a.lab('af'), a.lab('al')
        a(f's_waitcnt vmcnt(0)\ns_barrier\ns_cmp_lg_u32 {sW}, 0\ns_cbranch_scc1 {sk}')
        a(f's_lshl_b32 s14, {sU}, 7\ns_add_u32 s14, s14, {L.FA:#x}\nv_mov_b32 v12, {base}\ns_mov_b64 exec, 1\nbuffer_store_dword v12, v5, {WS}, s14 offen sc1')
        return sk, lp
    def allwait(sk, lp, base):
        a(f"""s_mov_b32 exec_lo, -1
        s_mov_b32 exec_hi, 0xffff
        v_mul_u32_u24 v15, 384, v0
        s_mov_b32 s14, {L.FA:#x}
        {lp}:
        s_sleep 4
        buffer_load_dword v12, v15, {WS}, s14 offen sc1
        buffer_load_dword v13, v15, {WS}, s14 offen offset:128 sc1
        buffer_load_dword v14, v15, {WS}, s14 offen offset:256 sc1
        v_min3_u32 v12, v12, v13, v14
        v_cmp_gt_u32 vcc, {base}, v12
        s_cbranch_vccz {sk}
        s_sub_u32 {sBUD}, {sBUD}, 1
        s_cbranch_scc0 {lp}
        s_mov_b32 {sBUD}, 0
        {sk}:
        s_mov_b64 exec, -1
        s_barrier""")
    iw = a.lab('iw')
    a(f's_cmp_lg_u32 {sW}, 0\ns_cbranch_scc1 {iw}')
    initwait(a)
    a(f'{iw}:')
    rts(a, 10, None, 204)
    sk, lp = allflag(1)
    allwait(sk, lp, 1)
    rts(a, 10, None, 205)
    a(f's_lshl_b32 s14, {sU}, 14\ns_add_u32 s14, s14, {L.KT:#x}\nv_lshlrev_b32 v4, 4, {TID}')
    for j in range(4): a(f'buffer_load_dwordx4 {vr(16 + 4 * j, 4)}, v4, {WS}, s14 offen sc1\ns_add_u32 s14, s14, 4096')
    for r in range(4): a(f'v_mov_b32 v{48 + r}, 0')
    for i in range(3): a(f'ds_write_b128 v6, v[48:51] offset:{KVR + 5120 + 1024 * i}')
    a(f'v_lshrrev_b32 v6, 2, {TID}\nv_sub_u32 v6, 63, v6\nv_lshrrev_b32 v7, 2, v6\nv_mul_u32_u24 v7, 80, v7\nv_and_b32 v6, 3, v6\nv_lshl_add_u32 v7, v6, 4, v7\nv_and_b32 v6, 3, v0\nv_lshl_add_u32 v7, v6, 13, v7')
    for j in range(4): a(f'ds_write_b128 v7, {vr(16 + 4 * j, 4)} offset:{KVR + (3 - j) * 16 * 80}')
    a.wait(th)
    a('ds_write_b16 v8, v9 offset:48')
    rts(a, 10, None, 200)
    a('v_and_b32 v6, 3, v0\nv_mul_u32_u24 v1, 4160, v6\nv_bfe_u32 v6, v0, 2, 3\nv_lshl_add_u32 v1, v6, 3, v1\nv_lshrrev_b32 v7, 5, v0\nv_lshl_add_u32 v1, v7, 4, v1\nv_add_u32 v1, s11, v1')
    a('v_and_b32 v6, 31, v0\nv_sub_u32 v6, 31, v6\nv_mul_u32_u24 v3, 80, v6\nv_add_u32 v3, s12, v3\nv_lshl_add_u32 v2, v7, 4, v3')
    a('v_lshlrev_b32 v7, 3, v7\nv_sub_u32 v3, v3, v7')
    srd(a, 84, 26, 2359296)
    lane48(a, 'v91', 'v92')
    a(f's_lshl_b32 s15, {sJ}, 2\ns_add_u32 s15, s15, {sW}\ns_and_b32 s15, s15, 511\ns_lshl_b32 s62, {sJ}, 7\ns_add_u32 s62, s62, {L.FH1:#x}\ns_mul_i32 s15, s15, 1152')
    XR = 100
    for r in range(4):
        a(f's_add_u32 s14, s15, {r * 512 * 1152}')
        for i in range(3): a(f'buffer_load_dwordx2 {vr(XR + 6 * r + 2 * i, 2)}, v92, {SK}, s14 offen offset:{384 * i}')
    a('s_waitcnt lgkmcnt(0)\ns_barrier')
    D1, D0, AR_, BR = 16, 32, 48, 64
    NA, NB = 4, 6
    ops = []
    for u in range(128):
        ops.append((u, 1))
        if u < 64: ops.append((u, 0))
    areg = lambda u: AR_ + 4 * (u % NA)
    rdA = lambda u: [f'ds_read_b64 {vr(areg(u), 2)}, v1 offset:{u * 32}', f'ds_read_b64 {vr(areg(u) + 2, 2)}, v1 offset:{u * 32 + 8}']
    rdB = lambda i: [f'ds_read_b128 {vr(BR + 4 * (i % NB), 4)}, v2 offset:{KVR + (1 - ops[i][1]) * 2560 + 80 * (ops[i][0] >> 1) + 32 * (ops[i][0] & 1)}']
    main = []; fill = {-1: []}
    for u in range(NA): fill[-1] += rdA(u)
    for i in range(NB): fill[-1] += rdB(i)
    for i, (u, N) in enumerate(ops):
        d = vr(D1 if N else D0, 16)
        main.append(f'{MF3232} {d}, {vr(areg(u), 4)}, {vr(BR + 4 * (i % NB), 4)}, {"0" if u == 0 else d}')
        f = []
        if i + NB < len(ops): f += rdB(i + NB)
        if (i + 1 == len(ops) or ops[i + 1][0] != u) and u + NA < 128: f += rdA(u + NA)
        fill[i] = f
    weave(a, main, fill)
    for N in (0, 1):
        for rq in range(4): a(f'ds_read_b64 {vr(48 + 8 * N + 2 * rq, 2)}, v3 offset:{KVR + (1 - N) * 2560 + 56 - 16 * rq}')
    a('s_barrier')
    a(f'v_and_b32 v6, 15, v0\nv_mul_u32_u24 v6, 1040, v6\nv_lshrrev_b32 v7, 5, v0\nv_lshl_add_u32 v6, v7, 7, v6\nv_bfe_u32 v7, v0, 4, 1\nv_lshl_add_u32 v6, v7, 3, v6\ns_lshl_b32 s14, {sW}, 5\nv_add_u32 v6, s14, v6')
    for N in (0, 1):
        D = D1 if N else D0
        for rq in range(4):
            s0, s1 = 48 + 8 * N + 2 * rq, 49 + 8 * N + 2 * rq
            a(f'v_and_b32 v64, 0xffff0000, v{s1}\nv_lshlrev_b32 v65, 16, v{s1}\nv_and_b32 v66, 0xffff0000, v{s0}\nv_lshlrev_b32 v67, 16, v{s0}')
            for r in range(4): a(f'v_fmac_f32 v{D + 4 * rq + r}, s60, v{64 + r}')
            a(f'v_cvt_pk_bf16_f32 v68, v{D + 4 * rq}, v{D + 4 * rq + 1}\nv_cvt_pk_bf16_f32 v69, v{D + 4 * rq + 2}, v{D + 4 * rq + 3}')
            a(f'ds_write_b64 v6, v[68:69] offset:{EX + N * 16 + rq * 256}')
    a(f's_mul_i32 s14, {sW}, 1040\nv_add_u32 v6, s14, v5')
    a(f'v_lshrrev_b32 v7, 3, {TID}\nv_mul_u32_u24 v7, 18432, v7\nv_and_b32 v8, 7, v0\nv_lshl_add_u32 v7, v8, 4, v7')
    a(f's_lshl_b32 s14, {sU}, 7\ns_add_u32 s14, s14, {L.YB:#x}')
    a('s_waitcnt lgkmcnt(0)\ns_barrier')
    for j in range(4): a(f'ds_read_b128 {vr(16 + 4 * j, 4)}, v6 offset:{EX + j * 4 * 1040}')
    for j in range(4):
        a(f'buffer_store_dwordx4 {vr(16 + 4 * j, 4)}, v7, {WS}, s14 offen sc1\ns_add_u32 s14, s14, {32 * 18432}')
    rts(a, 10, None, 201)
    sk, lp = allflag(2)
    a(f's_cmp_eq_u32 {sJ}, -1\ns_cbranch_scc1 {sk}')
    allwait(sk, lp, 2)
    a(f's_cmp_eq_u32 {sJ}, -1\ns_cbranch_scc1 roles')
    rts(a, 10, None, 202)
    RB = 20480
    a(f's_mul_i32 s14, {sJ}, 18432\ns_add_u32 s14, s14, {L.YB:#x}\ns_mul_i32 s11, {sW}, 4608\ns_add_u32 s14, s14, s11\ns_mov_b32 m0, s11')
    for i in range(4): a(f'buffer_load_dwordx4 v5, {WS}, s14 offen offset:{i * 1024} sc1 lds')
    a('s_add_u32 m0, s11, 4096\ns_add_u32 s14, s14, 4096\ns_mov_b64 exec, 0xffffffff')
    a(f'buffer_load_dwordx4 v5, {WS}, s14 offen sc1 lds\ns_mov_b64 exec, -1')
    a('v_lshlrev_b32 v6, 3, v0\nv_add_u32 v7, s11, v6')
    a(f'v_and_b32 v8, 15, v0\nv_mul_u32_u24 v8, 1168, v8\nv_lshrrev_b32 v9, 4, v0\nv_lshl_add_u32 v8, v9, 3, v8\ns_mul_i32 s14, {sW}, 288\nv_add_u32 v8, s14, v8')
    a(f's_mul_i32 s14, {sW}, 1168\nv_add_u32 v6, s14, v6\ns_cmp_eq_u32 {sW}, 0\ns_cselect_b32 s64, 1, 0\ns_mov_b32 s65, 0')
    a('s_waitcnt vmcnt(0)')
    for i in range(9): a(f'ds_read_b64_tr_b16 {vr(16 + 2 * i, 2)}, v7 offset:{i * 512}')
    for i in range(9): a(f'ds_write_b64 v8, {vr(16 + 2 * i, 2)} offset:{RB + i * 32}')
    a('s_waitcnt lgkmcnt(0)\ns_barrier')
    def st(base):
        def f(r):
            a(f's_add_u32 s14, s15, {base:#x}')
            for i in range(3): a(f'buffer_store_dwordx2 {vr(r + 2 * i, 2)}, v92, {WS}, s14 offen offset:{384 * i} sc1')
        return f
    lp = a.lab('ln')
    a(f's_mov_b32 s13, 0\n{lp}:')
    for i in range(3): a(f'ds_read_b64 {vr(10 + 2 * i, 2)}, v6 offset:{RB + 384 * i}')
    unpack(a, 20, XR, 6)
    for i in range(18): a(f'v_mov_b32 v{XR + i}, v{XR + 6 + i}')
    st(L.Y)(10)
    a_layer(a, 20, 10, 's[24:25]', 's12', st(L.X1), st(L.H1))
    rts(a, 10, 's13', 206)
    a(f's_add_u32 s13, s13, 1\ns_lshl_b32 s14, s13, 3\nv_mov_b32 v93, s14\ns_waitcnt vmcnt(0)\ns_barrier\ns_mov_b64 exec, s[64:65]\nbuffer_store_dword v93, v5, {WS}, s62 offen sc1\ns_mov_b64 exec, -1')
    a(f'v_add_u32 v6, {4 * 1168}, v6\ns_add_u32 s15, s15, {512 * 1152}\ns_cmp_lt_u32 s13, 4\ns_cbranch_scc1 {lp}')
    rts(a, 10, None, 203)
    a('s_barrier\ns_branch roles')

def kd(name, vg, acc):
    return f'''.amdhsa_kernel {name}
  .amdhsa_next_free_vgpr {vg}
  .amdhsa_next_free_sgpr 102
  .amdhsa_accum_offset {acc}
  .amdhsa_group_segment_fixed_size 0
  .amdhsa_kernarg_size 128
  .amdhsa_user_sgpr_count 2
  .amdhsa_user_sgpr_kernarg_segment_ptr 1
  .amdhsa_system_sgpr_workgroup_id_x 1
  .amdhsa_float_denorm_mode_32 3
.end_amdhsa_kernel
'''

def build():
    a = Asm()
    gen_mega(a)
    k = NAME + '_kernel'
    body = a.finish([k])
    ref = open(f'cdna_kernels/{NAME}.s.ref').read().split('\n')
    hdr = [l for l in ref if l.startswith(';') and 'aunch' not in l and 'grid=' not in l]
    out = '\n'.join(hdr + ['; @launch grid=(256,1,1) block=(256,1,1) lds=163840']) + '\n.amdgcn_target "amdgcn-amd-amdhsa--gfx950"\n.text\n'
    out += f'.globl {k}\n.type {k},@function\n' + body + '.code_end:\n.section .rodata,"a"\n.p2align 6\n' + kd(k, 512, 256)
    return out

if __name__ == '__main__':
    import argparse
    ap = argparse.ArgumentParser()
    ap.add_argument('-o', default=f'cdna_kernels/{NAME}.s')
    ap.add_argument('--debug', action='store_true')
    ap.add_argument('--roles', default='cqor')
    ap.add_argument('--launches', default='conv,ln1,mega')
    ap.add_argument('--timeline', action='store_true')
    ap.add_argument('--spos', type=int, default=None)
    ap.add_argument('--fixkv', action='store_true')
    ap.add_argument('--light', action='store_true')
    ap.add_argument('--opt', default='')
    ap.add_argument('--prof', default='')
    ap.add_argument('--steps', type=int, default=64)
    ar = ap.parse_args()
    NSTEPS = ar.steps; TIMELINE = ar.timeline; SPOS = ar.spos; FIXKV = ar.fixkv; LIGHT = ar.light; PROF = [int(x) for x in ar.prof.split(',') if x]
    OPT.update({k: int(v) for k, v in (x.split('=') for x in ar.opt.split(',') if x)})
    DEBUG = ar.debug; ROLES = ar.roles
    open(ar.o, 'w').write(build())
```

```python
import sys, math, struct
from asmlib import Asm, vr
import layout as L

NAME = 'interleave_layers__ssm_conv_h3__memory_aug_recurrent_mem_tr__prompt'
DEBUG = False
NSTEPS = 64
TIMELINE = False
SPOS = None
FIXKV = False
LIGHT = False
PROF = []
OPT = {}
ROLES = 'cqor'

def fbits(x): return struct.unpack('<I', struct.pack('<f', x))[0]
CSC = fbits(128 ** -0.5 * math.log2(math.e))
SMF = 'v_smfmac_f32_16x16x64_bf16'
MF32 = 'v_mfma_f32_16x16x32_bf16'
MF16 = 'v_mfma_f32_16x16x16_bf16'
DPPF = 'row_mask:0xf bank_mask:0xf'

sW, sX, sT, sBUD = 's3', 's8', 's9', 's10'
WS, WQ, WK, WV, WO, OUT = 's[4:7]', 's[32:35]', 's[36:39]', 's[40:43]', 's[44:47]', 's[48:51]'

def srd(a, d, b, nbytes):
    a(f's_mov_b32 s{d}, s{b}\ns_mov_b32 s{d+1}, s{b+1}\ns_mov_b32 s{d+2}, {nbytes:#x}\ns_mov_b32 s{d+3}, 0x20000')

def weave(a, main, fill):
    def em(x):
        if callable(x): x()
        else: a(x)
    for x in fill.get(-1, []): em(x)
    for i, m in enumerate(main):
        em(m)
        for x in fill.get(i, []): em(x)
    for k in fill: assert k < len(main), k

def poll_flag(a, vdst, voff, soff, need, sleep=0, imm=0):
    lp, dn = a.lab('pl'), a.lab('pd')
    a(f'{lp}:')
    a(f'buffer_load_dword {vdst}, {voff}, {WS}, {soff} offen offset:{imm} sc1')
    a(f'v_cmp_gt_u32 vcc, {need}, {vdst}')
    a(f's_cbranch_vccz {dn}')
    if sleep: a(f's_sleep {sleep}')
    a(f's_sub_u32 {sBUD}, {sBUD}, 1\ns_cbranch_scc0 {lp}\ns_mov_b32 {sBUD}, 0')
    a(f'{dn}:')

def warm(a):
    here = a.lab('wm')
    a(f's_getpc_b64 s[100:101]\n{here}:')
    a(f's_sub_u32 s100, s100, {here}-{NAME}_kernel\ns_subb_u32 s101, s101, 0')
    a(f's_lshl_b32 s99, {sT}, 2\ns_add_u32 s99, s99, {sW}\ns_lshl_b32 s99, s99, 10\nv_lshlrev_b32 v8, 4, v0\nv_add_u32 v8, s99, v8\nv_min_u32 v8, .code_end-{NAME}_kernel-16, v8')
    a('global_load_dwordx4 v[8:11], v8, s[100:101]')

def arrive(a):
    sk = a.lab('ar')
    a(f's_cmp_lg_u32 {sW}, 0\ns_cbranch_scc1 {sk}\ns_load_dwordx2 s[100:101], s[0:1], 112')
    a(f'v_mov_b32 v10, {sX}\nv_lshlrev_b32 v10, 5, v10\nv_mov_b32 v11, 1\ns_mov_b64 exec, 1\ns_waitcnt lgkmcnt(0)')
    a(f'global_atomic_add v10, v11, s[100:101] offset:8 sc1\ns_mov_b64 exec, -1\n{sk}:')

def cntwait(a, off, need):
    lp, dn = a.lab('cw'), a.lab('cd')
    a('s_load_dwordx2 s[100:101], s[0:1], 112\nv_and_b32 v12, 7, v0\nv_lshlrev_b32 v12, 5, v12\ns_waitcnt lgkmcnt(0)')
    a(f"""{lp}:
    global_load_dword v13, v12, s[100:101] offset:{off} sc1
    v_cmp_gt_u32 vcc, {need}, v13
    s_cbranch_vccz {dn}
    s_sleep 2
    s_sub_u32 {sBUD}, {sBUD}, 1
    s_cbranch_scc0 {lp}
    s_mov_b32 {sBUD}, 0
    {dn}:""")

def initwait(a): cntwait(a, 4, 32)

def load_units(a, units, vTR, vLW, sLB, sTMP, tmp, NS=9, vPR=None, hook=None, nt=False, depth=9):
    toks = {}
    def issue(u):
        s_, vo, sb, imm = units[u][:4]
        t = a.tok('u')
        for q in range(4):
            a(f's_add_u32 m0, {sLB}, {(u % NS) * 4096 + q * 1024}')
            a(f's_add_u32 {sTMP}, {sb}, {imm[q]:#x}')
            a(f'buffer_load_dwordx4 {vo}, {s_}, {sTMP} offen {"nt " if nt else ""}lds', tok=t)
        toks[u] = t
    for u in range(min(depth, len(units))): issue(u)
    for u in range(len(units)):
        a.wait(toks[u])
        if depth < NS and u + depth < len(units):
            a('s_waitcnt lgkmcnt(0)')
            issue(u + depth)
        if hook: hook(u)
        d0, d1 = units[u][4], units[u][5]
        perm = len(units[u]) > 6 and units[u][6]
        inplace = d0 == 'lds'
        if inplace: d0, d1 = ('v', tmp + 16), ('v', tmp + 24)
        t0, t1 = (('v', tmp), ('v', tmp + 8)) if perm else (d0, d1)
        so = (u % NS) * 4096
        def wb(r):
            a('s_waitcnt lgkmcnt(0)')
            for i in range(4): a(f'ds_write_b128 {vLW}, {vr(r + 4 * i, 4)} offset:{so + i * 1024}')
        for T, d in enumerate((t0, t1)):
            if d is None: continue
            for rp in range(4):
                a(f'ds_read_b64_tr_b16 {vr(d[1] + 2 * rp, 2, d[0])}, {vTR} offset:{so + T * 32 + (rp & 1) * 256 + (rp >> 1) * 2048}')
        if perm:
            wb(tmp)
            for T, d in enumerate((d0, d1)):
                for hh in range(2):
                    a(f'ds_read_b128 {vr(d[1] + 4 * hh, 4, d[0])}, {vPR} offset:{so + T * 16 + hh * 1024}')
        if inplace: wb(tmp + 16)
        if depth == NS and u + NS < len(units):
            a('s_waitcnt lgkmcnt(0)')
            issue(u + NS)
    a('s_waitcnt lgkmcnt(0)')

def mk_vTR(a, dst, t0, sLB):
    a(f'''v_lshrrev_b32 {dst}, 4, v0
    v_lshlrev_b32 {dst}, 9, {dst}
    v_bfe_u32 {t0}, v0, 2, 2
    v_lshl_add_u32 {dst}, {t0}, 6, {dst}
    v_and_b32 {t0}, 3, v0
    v_lshl_add_u32 {dst}, {t0}, 3, {dst}
    v_add_u32 {dst}, {sLB}, {dst}''')

def bits(a, dst, tmp, fields, const=None):
    first = True
    for lo, wd, sh in fields:
        if first:
            a(f'v_bfe_u32 {dst}, v0, {lo}, {wd}')
            if sh: a(f'v_lshlrev_b32 {dst}, {sh}, {dst}')
            first = False
        else:
            a(f'v_bfe_u32 {tmp}, v0, {lo}, {wd}')
            a(f'v_lshl_add_u32 {dst}, {tmp}, {sh}, {dst}')
    if const is not None: a(f'v_add_u32 {dst}, {const}, {dst}')

def xreduce(a, op, x, t):
    for sw in ('v_permlane16_swap_b32', 'v_permlane32_swap_b32'):
        a(f'v_mov_b32 {t}, {x}\n{sw} {t}, {x}\n{op} {x}, {x}, {t}')

def stamp(a, idx, force=False):
    if PROF and idx in (1, 3, 4, 5) and not force: return
    if DEBUG: a(f's_memtime s[{64 + 2 * idx}:{65 + 2 * idx}]')

def rts(a, vt, idx_sgpr, add):
    if not TIMELINE: return
    sk = a.lab('ts')
    a(f's_cmp_lg_u32 {sW}, 0\ns_cbranch_scc1 {sk}')
    a('s_memrealtime s[100:101]\ns_waitcnt lgkmcnt(0)')
    a(f'v_mov_b32 v{vt}, s100\ns_lshl_b32 s100, {sX}, 5\ns_add_u32 s100, s100, {sT}\ns_lshl_b32 s100, s100, 8')
    if idx_sgpr: a(f's_lshl_b32 s101, {idx_sgpr}, 1\ns_add_u32 s100, s100, s101')
    a(f's_add_u32 s100, s100, {add}\ns_lshl_b32 s100, s100, 2\ns_add_u32 s100, s100, {L.DBG2:#x}')
    a(f'v_mov_b32 v{vt + 1}, 0\ns_mov_b64 exec, 1\nbuffer_store_dword v{vt}, v{vt + 1}, {WS}, s100 offen\ns_mov_b64 exec, -1')
    a(f'{sk}:')

class Stream:
    def __init__(self, a):
        self.a = a; self.m = []; self.g = {}
    def mf(self, text): self.m.append(text); return len(self.m) - 1
    def add(self, pos, kind, *xs):
        self.g.setdefault((pos, kind), []).extend(xs)
    def emit(self):
        a = self.a
        def em(x):
            if callable(x): x()
            else: a(x)
        for (p, k) in self.g: assert -1 <= p < len(self.m), p
        for i in range(-1, len(self.m)):
            if i >= 0: a(self.m[i])
            if i >= 0 and i + 1 < len(self.m) and not self.g.get((i, 'X')):
                ops = self.m[i + 1].split(None, 1)[1]
                a.need(ops)
            for k in 'SDVX':
                for x in self.g.get((i, k), []): em(x)

def gen_chain(a):
    MEM = 147456; QX = MEM + 9216; KXM = QX + 2176; SX = KXM + 2112
    IDX, AR, LW, QR, QW, KR, OR, RW, L2, RR, TA, JK = ['v%d' % i for i in range(12)]
    SC = 12; KV = 16; AQ = 24; ACQ = 40; ACK = 48; Z = 56; X = 64; Yb = 72
    sL, sH, sLB, sTMP, sB0, sB1 = 's11', 's12', 's13', 's14', 's15', 's16'
    sS, sKV, sKO, sVO, sM0, sM1, sM2, sP0, sP1, sU, sKVM, sFM, sFK, sNEED, sSW, sOW, sMW, sPO, sT2 = ['s%d' % i for i in range(52, 64)] + ['s17', 's18', 's19', 's20', 's21', 's22', 's23']
    LO8, HFW, L32 = 's[24:25]', 's[26:27]', 's[28:29]'
    sC, sT3 = 's30', 's31'
    ODD = 's[80:81]'; SM = 82
    sR = ['s90', 's91', 's92', 's93']; sRM = 's94'; sMB = 's95'; sRA = sFM; sRB = 's44'; sTO = 's45'; sPF = 's47'; sPR = 's48'; sM4 = 's49'; sS1 = 's50'; sPV = 's51'; sP8 = 's43'; sUR = sPR
    a('chain:')
    a(f's_mov_b32 {sL}, {sX}\ns_mov_b32 {sH}, {sT}\ns_mul_i32 {sLB}, {sW}, 36864')
    vTR, vo1, vo2, vo3, vPR, t0 = 'v20', 'v21', 'v22', 'v23', 'v19', 'v24'
    mk_vTR(a, vTR, t0, sLB)
    bits(a, LW, t0, [(0, 6, 4)], sLB)
    bits(a, vPR, t0, [(1, 1, 11), (4, 2, 8), (2, 2, 6), (0, 1, 5)], sLB)
    bits(a, vo1, t0, [(0, 2, 4), (2, 1, 17), (3, 1, 16), (4, 2, 14)])
    bits(a, vo2, t0, [(0, 2, 4), (2, 1, 13), (4, 2, 15), (3, 1, 17), (3, 1, 20)])
    bits(a, vo3, t0, [(3, 1, 5), (5, 1, 4), (4, 1, 1), (2, 1, 0)])
    a(f'v_mul_u32_u24 {vo3}, 1152, {vo3}\nv_and_b32 {t0}, 3, v0\nv_lshl_add_u32 {vo3}, {t0}, 4, {vo3}')
    a(f's_lshl_b32 {sB0}, {sH}, 8\ns_lshl_b32 {sTMP}, {sW}, 6\ns_add_u32 {sB0}, {sB0}, {sTMP}')
    a(f's_mul_i32 {sB1}, {sH}, {128 * 1152}\ns_mul_i32 {sTMP}, {sW}, 288\ns_add_u32 {sB1}, {sB1}, {sTMP}')
    ldsu = [('q', 0), ('q', 1), ('q', 7), ('k', 4), ('v', 1), ('o', 0, 0), ('o', 1, 0), ('o', 2, 1), ('o', 3, 1)]
    allu = [(m, k) for m in 'qkv' for k in range(9)] + [('o', p, k) for p in range(5) for k in range(2)]
    order = [u for u in allu if u not in ldsu] + ldsu
    pool = [('a', 8 * i) for i in range(32)] + [('v', 80 + 8 * i) for i in range(22)]
    W = {}
    units = []
    for ui, u in enumerate(order):
        if u[0] == 'o':
            keys = [('o', 2 * u[1], u[2]), ('o', 2 * u[1] + 1, u[2])]
            src = (WO, vo3, sB1, [(64 * u[2] + 4 * q) * 1152 + 64 * u[1] for q in range(4)])
        else:
            keys = [(u[0], 0, u[1]), (u[0], 1, u[1])]
            kap = u[1]
            s_ = {'q': WQ, 'k': WK, 'v': WV}[u[0]]
            if kap < 8: src = (s_, vo1, sB0, [(144 * (2 * (kap & 1) + (q >> 1)) + 32 * ((kap >> 1) ^ 2) + (q & 1)) * 8192 for q in range(4)])
            else: src = (s_, vo2, sB0, [(288 * (q >> 1) + 128 + 2 * (q & 1)) * 8192 for q in range(4)])
        pm = u[0] in 'qk'
        if u in ldsu:
            for T in range(2): W[keys[T]] = ('lds', (ui % 9) * 4096 + T * 2048)
            units.append(src + ('lds', None, pm))
        else:
            d = []
            for T in range(2):
                if keys[T][0] == 'o' and keys[T][1] == 9: d.append(None)
                else:
                    W[keys[T]] = pool.pop(0); d.append(W[keys[T]])
            units.append(src + tuple(d) + (pm,))
    assert not pool
    a(f's_mul_i32 {sM0}, {sL}, {L.MR_L:#x}\ns_add_u32 {sM0}, {sM0}, {L.MR:#x}\ns_mul_i32 {sT2}, {sH}, 9216\ns_add_u32 {sT2}, {sT2}, {sM0}\ns_mul_i32 {sT3}, {sW}, 2304\ns_add_u32 {sT2}, {sT2}, {sT3}')
    c1 = a.lab('c1')
    a('s_load_dwordx2 s[64:65], s[0:1], 56')
    bits(a, 'v25', 'v29', [(4, 2, 0)])
    a(f'v_mul_u32_u24 v25, 2304, v25\nv_and_b32 v29, 15, v0\nv_lshl_add_u32 v25, v29, 1, v25\ns_mul_i32 s70, {sW}, 288')
    bits(a, 'v26', 'v29', [(4, 2, 8), (0, 1, 5), (1, 3, 2), (5, 1, 6)])
    bits(a, 'v27', 'v29', [(4, 2, 8), (0, 1, 1), (1, 1, 5), (2, 2, 2), (5, 1, 6)])
    a(f's_lshr_b32 s71, {sW}, 1\ns_lshl_b32 s71, s71, 6\ns_and_b32 s72, {sW}, 1\ns_lshl_b32 s72, s72, 4\ns_or_b32 s71, s71, s72\nv_xor_b32 v27, s71, v27')
    a('s_lshl_b32 s72, s72, 2\nv_xor_b32 v26, s72, v26\nv_add_u32 v28, 4096, v26')
    a(f's_lshr_b32 s71, {sW}, 1\ns_lshl_b32 s71, s71, 10\ns_add_u32 s71, s71, {sM0}\ns_add_u32 s72, {sM0}, 8192')
    a(f's_waitcnt lgkmcnt(0)\ns_mov_b32 s66, 9216\ns_mov_b32 s67, 0x20000\ns_cmp_lg_u32 {sH}, 0\ns_cbranch_scc1 {c1}x')
    for T in range(9):
        for b in range(2): a(f'buffer_load_ushort v{32 + 2 * T + b}, v25, s[64:67], s70 offen offset:{b * 1152 + T * 32}')
    a(f'{c1}x:')
    rts(a, 30, None, 202)
    def hook(u):
        if u == 0:
            rts(a, 30, None, 200)
            a(f's_cmp_lg_u32 {sH}, 0\ns_cbranch_scc1 {c1}y')
            for T in range(9):
                for b in range(2):
                    if T < 8: a(f'buffer_store_short v{32 + 2 * T + b}, {"v28" if T < 4 else "v26"}, {WS}, s71 offen offset:{b * 128 + ((T >> 1) & 1) * 2048 + (T & 1) * 2}')
                    else: a(f'buffer_store_short v{32 + 2 * T + b}, v27, {WS}, s72 offen offset:{b * 128}')
            a(f'{c1}y:')
        if u == OPT.get('iu', 1):
            a('v_mov_b64 v[68:69], -1\nv_mov_b64 v[70:71], -1\nv_lshlrev_b32 v72, 4, v0\ns_mov_b32 exec_hi, 0xffff')
            for sl in range(3):
                a(f's_add_u32 s73, {sT2}, {sl * L.SLOT + 9216}')
                for i in range(3): a(f'buffer_store_dwordx4 v[68:71], v72, {WS}, s73 offen offset:{768 * i}')
            a(f's_sub_u32 s73, {sH}, 1\ns_cmp_gt_u32 s73, 1\ns_cbranch_scc1 {c1}\ns_mul_i32 s73, {sH}, {L.SLOT}\ns_add_u32 s73, s73, {sM0}\ns_add_u32 s73, s73, {sT3}')
            for i in range(3): a(f'buffer_store_dwordx4 v[68:71], v72, {WS}, s73 offen offset:{768 * i}')
            a(f'{c1}:\ns_mov_b64 exec, -1')
        if u == 14:
            a('s_barrier'); arrive(a)
        if u == 30: warm(a)
    load_units(a, units, vTR, LW, sLB, sTMP, 32, vPR=vPR, hook=hook, nt=OPT.get('nt', 0), depth=OPT.get('dep', 9))
    rts(a, 30, None, 201)
    initwait(a)
    a(f'v_and_b32 v11, 7, v0\nv_cmp_eq_u32 vcc, {sX}, v11\nv_cndmask_b32 v11, 0, 32, vcc')
    cntwait(a, 8, 'v11')
    rts(a, 30, None, 1)
    bits(a, AR, t0, [(2, 2, 8), (0, 1, 7), (4, 2, 5), (1, 1, 4)])
    a(f'v_and_b32 {t0}, 8, v0\nv_lshlrev_b32 {t0}, 3, {t0}\nv_xor_b32 {AR}, {AR}, {t0}\nv_add_u32 {AR}, {MEM}, {AR}')
    bits(a, QR, t0, [(3, 1, 10), (3, 1, 5), (0, 3, 6), (4, 2, 4)], QX)
    a(f's_lshl_b32 {sTMP}, {sW}, 9\ns_lshr_b32 {sT2}, {sW}, 1\ns_lshl_b32 {sT2}, {sT2}, 5\ns_add_u32 {sTMP}, {sTMP}, {sT2}\ns_add_u32 {sTMP}, {sTMP}, {QX}')
    bits(a, QW, t0, [(4, 2, 7), (0, 4, 2)], sTMP)
    bits(a, KR, t0, [(1, 1, 10), (1, 1, 5), (2, 2, 7), (0, 1, 6), (4, 2, 4)], KXM)
    bits(a, OR, t0, [(1, 1, 9), (1, 1, 5), (2, 2, 7), (0, 1, 6), (4, 2, 4)], QX)
    bits(a, L2, t0, [(0, 6, 1)])
    bits(a, RR, t0, [(3, 3, 0)])
    a(f'v_mul_u32_u24 {RR}, 9216, {RR}\nv_and_b32 {t0}, 7, v0\nv_lshl_add_u32 {RR}, {t0}, 4, {RR}')
    a('s_mov_b32 s24, 0x00ff00ff\ns_mov_b32 s25, 0x00ff00ff')
    a(f's_cmp_ge_u32 {sW}, 2\ns_cselect_b32 s26, 0xff00ff00, s24\ns_mov_b32 s27, s26')
    a('s_mov_b32 s28, -1\ns_mov_b32 s29, 0\ns_mov_b32 s80, 0xaaaaaaaa\ns_mov_b32 s81, 0xaaaaaaaa')
    a(f's_cmp_eq_u32 {sW}, 2\ns_cselect_b32 s80, 0xf0f0f0f0, s80\ns_mov_b32 s81, s80')
    for p in range(4):
        m8 = 0x11111111 << p
        mm = sum(1 << m for m in range(16) if 2 * ((m >> 1) & 1) + ((m >> 2) & 1) == p) * 0x10001
        a(f's_mov_b32 s{SM + 2 * p}, {mm:#x}\ns_cselect_b32 s{SM + 2 * p}, {m8:#x}, s{SM + 2 * p}\ns_mov_b32 s{SM + 2 * p + 1}, s{SM + 2 * p}')
    a(f's_mov_b32 {sC}, {CSC:#x}\ns_mov_b32 {sS}, 0')
    a(f's_lshl_b32 {sKV}, {sL}, 5\ns_add_u32 {sKV}, {sKV}, {sH}\ns_lshl_b32 {sKVM}, {sKV}, 18\ns_lshl_b32 {sKV}, {sKV}, 20')
    a(f's_add_u32 {sKV}, {sKV}, {L.KV:#x}\ns_add_u32 {sKVM}, {sKVM}, {L.KVM:#x}')
    a(f's_and_b32 {sKO}, {sW}, 1\ns_lshl_b32 {sKO}, {sKO}, 12\ns_lshr_b32 {sTMP}, {sW}, 1\ns_lshl_b32 {sTMP}, {sTMP}, 11\ns_add_u32 {sKO}, {sKO}, {sTMP}\ns_sub_u32 {sKO}, {sKO}, {sLB}')
    a(f's_lshl_b32 {sVO}, {sW}, 11\ns_add_u32 {sVO}, {sVO}, 8192\ns_sub_u32 {sVO}, {sVO}, {sLB}')
    a(f's_mul_i32 {sM0}, {sL}, {L.MR_L:#x}\ns_add_u32 {sM0}, {sM0}, {L.MR:#x}\ns_add_u32 {sM1}, {sM0}, {L.SLOT}\ns_add_u32 {sM2}, {sM0}, {2 * L.SLOT}')
    a(f's_mul_i32 {sPO}, {sH}, 9216\ns_add_u32 {sPO}, {sPO}, 9216')
    a(f'''s_lshl_b32 {sU}, {sW}, 5
    s_add_u32 {sU}, {sU}, {sH}
    s_lshr_b32 {sTMP}, {sH}, 2
    s_add_u32 {sTMP}, {sTMP}, 64
    s_cmp_eq_u32 {sW}, 2
    s_cselect_b32 {sU}, {sTMP}, {sU}
    s_lshl_b32 {sU}, {sU}, 7
    s_and_b32 {sTMP}, {sH}, 3
    s_cmp_eq_u32 {sTMP}, 0
    s_cselect_b32 {sTMP}, 3, 2
    s_cmp_ge_u32 {sW}, {sTMP}
    s_cselect_b32 {sU}, -1, {sU}''')
    a(f's_lshl_b32 {sFK}, {sL}, 5\ns_add_u32 {sFK}, {sFK}, {sH}\ns_lshl_b32 {sFK}, {sFK}, 8\ns_add_u32 {sFK}, {sFK}, {L.FKV:#x}')
    a(f's_and_b32 {sSW}, {sW}, 1\ns_mul_i32 {sSW}, {sSW}, 1056\ns_lshr_b32 {sTMP}, {sW}, 1\ns_mul_i32 {sTMP}, {sTMP}, 544\ns_sub_u32 {sSW}, {sSW}, {sTMP}\ns_add_u32 {sSW}, {sSW}, {SX - QX}')
    a(f's_mul_i32 {sOW}, {sW}, 544\ns_lshl_b32 {sMW}, {sW}, 11\ns_lshl_b32 {sMB}, {sW}, 8\ns_add_u32 {sMB}, {sMB}, 8192')
    a(f'''s_lshr_b32 {sT2}, {sU}, 3
    s_lshr_b32 {sT3}, {sU}, 2
    s_xor_b32 {sT2}, {sT2}, {sT3}
    s_and_b32 {sT2}, {sT2}, 64
    s_and_b32 {sT3}, {sU}, 0x3c00
    s_add_u32 {sB0}, {sT2}, {sT3}
    s_and_b32 {sT3}, {sU}, 0x180
    s_lshl_b32 {sT3}, {sT3}, 1
    s_add_u32 {sB0}, {sB0}, {sT3}
    s_cmp_lt_u32 {sW}, 2
    s_cselect_b32 {sT3}, 0x1000, 0
    s_xor_b32 {sB0}, {sB0}, {sT3}''')
    bits(a, RW, t0, [(0, 4, 2), (4, 1, 7)], sB0)
    a(f'v_bfe_u32 {t0}, v0, 1, 1\nv_mul_u32_u24 {t0}, 0xaaaa, {t0}\nv_add_u32 {IDX}, 0x4444, {t0}')
    a(f'''s_mov_b32 {sRA}, 0
    s_mov_b32 {sRB}, {sM0}
    s_mov_b32 {sRM}, {L.RING_END:#x}
    s_lshr_b32 {sP0}, {sW}, 1
    s_lshl_b32 {sP0}, {sP0}, 5
    s_add_u32 {sP0}, {sP0}, {QX}
    s_lshl_b32 {sTMP}, {sH}, 7
    s_cmp_eq_u32 {sU}, -1
    s_cselect_b32 {sUR}, {sTMP}, {sU}
    s_lshl_b32 {sM4}, {sW}, 10
    s_lshr_b32 {sP8}, {sW}, 1
    s_lshl_b32 {sP8}, {sP8}, 9
    s_and_b32 {sTMP}, {sW}, 1
    s_lshl_b32 {sTMP}, {sTMP}, 6
    s_add_u32 {sP8}, {sP8}, {sTMP}
    s_add_u32 {sP8}, {sP8}, 8192
    s_lshl_b32 {sTO}, {sW}, 12
    s_add_u32 {sTO}, {sTO}, {0 if FIXKV else 16384}
    s_mov_b32 s96, 0x3f803f80
    s_mov_b32 s97, 0x3f803f80''')
    def pollkv(sfl):
        lp, dn = a.lab('pl'), a.lab('pd')
        a(f'''{lp}:
        buffer_load_ushort {JK}, {L2}, {WS}, {sfl} offen sc1
        v_cmp_gt_u32 vcc, {sNEED}, {JK}
        s_cbranch_vccz {dn}
        s_sub_u32 {sBUD}, {sBUD}, 1
        s_cbranch_scc0 {lp}
        s_mov_b32 {sBUD}, 0
        {dn}:''')
    a(f's_mov_b32 {sNEED}, 1')
    pollkv(sFK)
    KX, VX = KV, Yb
    ldKV = lambda r, so: [f'buffer_load_dwordx4 {vr(r, 4)}, {LW}, {WS}, {so} offen sc1', f'buffer_load_dwordx4 {vr(r + 4, 4)}, {LW}, {WS}, {so} offen offset:1024 sc1']
    a(f's_add_u32 {sTMP}, {sKV}, {sKO}\ns_add_u32 {sKO}, {sKO}, {0 if FIXKV else 16384}')
    for x in ldKV(KX, sTMP): a(x)
    def ldfrag(key, buf):
        off = W[key][1]
        return [f'ds_read_b128 {vr(buf, 4)}, {LW} offset:{off}', f'ds_read_b128 {vr(buf + 4, 4)}, {LW} offset:{off + 1024}']
    fb = {('q', 0, 0): ACK, ('q', 1, 0): VX, ('q', 0, 1): X, ('q', 1, 1): Z, ('q', 0, 7): X, ('q', 1, 7): Z,
          ('k', 0, 4): X, ('k', 1, 4): Z, ('v', 0, 1): X, ('v', 1, 1): KX,
          ('o', 0, 0): VX, ('o', 1, 0): ACK, ('o', 2, 0): VX, ('o', 3, 0): ACK, ('o', 4, 1): VX, ('o', 5, 1): ACK, ('o', 6, 1): 24, ('o', 7, 1): VX}
    assert set(fb) == {k for k in W if W[k][0] == 'lds'}
    wop = lambda key: vr(fb[key], 8) if key in fb else vr(W[key][1], 8, W[key][0])
    lf = lambda key: ldfrag(key, fb[key])
    aslot = lambda k: AQ + 4 * (k % 4)
    rdA = lambda k: f'ds_read_b128 {vr(aslot(k), 4)}, {AR} offset:{k * 1024}'
    z2 = lambda r: f'v_mov_b64 {vr(r, 2)}, 0'
    pre = [('q', 0, 0), ('q', 0, 1), ('q', 1, 0), ('q', 1, 1)]
    acc = {'q': ACQ, 'k': ACK, 'v': Z}
    sm = lambda m, T, k: f'{SMF} {vr(acc[m] + 4 * T, 4)}, {vr(aslot(k), 4)}, {wop((m, T, k))}, {IDX}'

    ool = []
    LOOP, XIT, REDO = a.lab('cloop'), a.lab('cexit'), a.lab('credo')
    a(f's_branch {REDO}x')
    a(f'{REDO}:\ns_waitcnt vmcnt(0) lgkmcnt(0)\n{REDO}x:')
    for k in (pre[0], pre[3]):
        for x in lf(k): a(x)
    a(f'{LOOP}:')
    i_loop = len(a.ins)
    a(f"""s_add_u32 {sTMP}, {sM0}, {sM4}
    s_sub_u32 {sTMP}, {sTMP}, {sLB}
    s_add_u32 m0, {sM4}, {MEM}""")
    a('s_barrier')
    if DEBUG: a('s_memtime s[98:99]')
    for r in range(ACQ, ACQ + 8, 2): a(z2(r))
    a(f"""v_lshlrev_b32 {TA}, 1, {L2}
    s_add_u32 {sTO}, {sTMP}, 4096
    s_add_u32 {sT2}, {sM0}, {sMB}
    s_add_u32 {sT3}, {sKV}, {sVO}
    s_add_u32 {sS1}, {sS}, 1
    s_mov_b32 {sPV}, 0
    s_and_b32 {sPF}, {sS1}, 1
    s_lshl_b32 {sPF}, {sPF}, 7
    s_add_u32 {sPF}, {sPF}, {sFK}
    s_lshr_b32 {sNEED}, {sS1}, 1
    s_add_u32 {sNEED}, {sNEED}, 1
    s_min_u32 {sNEED}, {sNEED}, 32""")
    for _ in range(OPT.get('dB', 8)): a('s_nop 3')
    tb0, tb1 = a.tok('b'), a.tok('b')
    shot = f'buffer_load_dwordx4 {LW}, {WS}, {sTMP} offen sc1 lds'
    rest = f"""s_add_u32 m0, {sM4}, {MEM + 4096}
    buffer_load_dwordx4 {LW}, {WS}, {sTO} offen sc1 lds
    s_add_u32 m0, {sMB}, {MEM}
    buffer_load_dword {TA}, {WS}, {sT2} offen sc1 lds
    s_add_u32 m0, {sM4}, {MEM}"""
    a(shot, tok=tb0)
    for k in (pre[1], pre[2]):
        for x in lf(k): a(x)
    for _ in range(OPT.get('dS', 3)): a('s_nop 3')
    a(rest)
    a(shot)
    a.wait(tb0)
    BG = a.lab('bg')
    a(f's_barrier\n{BG}:')
    br = a.lab('br')
    ool.append(f"""{br}:
    s_sub_u32 {sBUD}, {sBUD}, 1
    s_cbranch_scc1 {br}c
    v_mov_b64 {vr(ACQ, 2)}, 0
    v_mov_b64 {vr(ACQ + 2, 2)}, 0
    v_mov_b64 {vr(ACQ + 4, 2)}, 0
    v_mov_b64 {vr(ACQ + 6, 2)}, 0
    s_add_u32 {sPV}, {sPV}, 1
    s_cmp_lt_u32 {sPV}, 2
    s_waitcnt vmcnt(0)
    s_cbranch_scc1 {br}d
    {rest}
    {br}d:
    {shot}
    s_branch {BG}
    {br}c:
    s_mov_b32 {sBUD}, 0
    s_branch {br}b""")
    i_s0 = len(a.ins)
    stamp(a, 0)
    if DEBUG: a(f's_mov_b32 s76, {sBUD}')
    st = Stream(a)
    for k in range(9):
        for T in range(2): st.mf(sm('q', T, k))
    sx = [f'{MF32} {vr(SC, 4)}, {vr(KX, 4)}, {vr(ACQ, 4)}, 0', f'{MF32} {vr(SC, 4)}, {vr(KX + 4, 4)}, {vr(ACQ + 4, 4)}, {vr(SC, 4)}']
    for k in range(8, -1, -1):
        if k == 2:
            for x in sx: st.mf(x)
        for T in range(2): st.mf(sm('k', T, k))
    def D(*items):
        for p, x in items: st.add(p, 'D', x)
    st.add(-1, 'D', *[rdA(k) for k in range(4)])
    st.add(1, 'S', lambda: a.need(vr(AQ, 12))); st.add(1, 'V', f'v_max3_u32 v{SC}, v{AQ}, v{AQ + 4}, v{AQ + 8}')
    st.add(2, 'S', lambda: a.need(vr(AQ, 16))); st.add(2, 'V', f'v_max_u32 v{SC}, v{SC}, v{AQ + 12}')
    st.add(3, 'V', f'v_cmp_eq_u32 vcc, -1, v{SC}')
    st.add(4, 'X', 's_waitcnt vmcnt(1)', f's_cbranch_vccnz {br}', f'{br}b:', 's_barrier', rdA(4))
    fx, fz = lf(('q', 0, 7)), lf(('q', 1, 7))
    lv = ldKV(VX, sT3)
    D((5, rdA(5)), (6, f'buffer_load_ushort {JK}, {L2}, {WS}, {sPF} offen sc1'), (6, rdA(6)), (7, fx[0]), (8, fx[1]), (9, rdA(7)), (10, fz[0]), (11, fz[1]), (12, rdA(8)), (13, lv[0]))
    fx, fz = lf(('k', 0, 4)), lf(('k', 1, 4))
    D((14, fx[0]), (15, fx[1]), (16, fz[0]), (17, fz[1]), (18, lv[1]))
    D((19, rdA(4)), (21, rdA(3)), (23, rdA(2)), (25, rdA(1)), (28, rdA(0)))
    for i, p in enumerate((5, 7, 8, 9)): st.add(p, 'V', z2(ACK + 2 * i))
    st.add(10, 'V', f'v_mov_b32 v{SC}, -1')
    st.add(11, 'V', f'v_add_u32 {TA}, {sSW}, {QR}')
    st.add(12, 'S', f'buffer_store_short v{SC}, {L2}, {WS}, {sRM} offen')
    st.add(8, 'S', f's_add_u32 {sTMP}, {sKV}, {sKO}'); st.add(20, 'S', f's_sub_u32 {sT3}, {sKVM}, {sP0}')
    def epi(acc_, pk):
        ad = [f'v_add_f32 v{acc_ + i}, v{acc_ + i}, v{acc_ + i + 2}' for i in (0, 1, 4, 5)]
        if pk == 'T': cv = [f'v_cvt_pk_bf16_f32 v{acc_}, v{acc_}, v{acc_+4}', f'v_cvt_pk_bf16_f32 v{acc_+1}, v{acc_+1}, v{acc_+5}']
        else: cv = [f'v_cvt_pk_bf16_f32 v{acc_}, v{acc_}, v{acc_+1}', f'v_cvt_pk_bf16_f32 v{acc_+1}, v{acc_+4}, v{acc_+5}']
        return ad + cv
    tq, tk, tkm, trs = a.tok('q'), a.tok('k'), a.tok('km'), a.tok('rs')
    e = epi(ACQ, 'T')
    st.add(19, 'V', e[0], e[1]); st.add(20, 'V', e[2], e[3]); st.add(21, 'V', e[4], e[5])
    st.add(22, 'D', lambda: a(f'ds_write2_b32 {QW}, v{ACQ}, v{ACQ + 1} offset1:16', tok=tq))
    st.add(22, 'V', f'v_cmp_u_f32 vcc, v{ACQ + 4}, v{ACQ + 5}')
    rd = a.lab('rd')
    st.add(24, 'S', f's_cbranch_vccnz {rd}', f'{rd}b:')
    for i, p in enumerate((28, 29, 32, 33)): st.add(p, 'V', z2(Z + 2 * i))
    st.add(26, 'X', lambda: a.wait(tq), 's_barrier', f'ds_read_b128 {vr(ACQ, 4)}, {QR}', f'ds_read_b128 {vr(ACQ + 4, 4)}, {QR} offset:512')
    fx, fz = lf(('v', 0, 1)), lf(('v', 1, 1))
    D((29, fx[0]), (30, fx[1]), (32, fz[0]), (33, fz[1]))
    st.add(34, 'X', f's_mov_b64 exec, {HFW}', f'ds_write_b128 {TA}, {vr(SC, 4)}', 's_mov_b64 exec, -1')
    fk = a.lab('fk')
    ool.append(f"""{fk}:
    buffer_load_ushort {JK}, {L2}, {WS}, {sPF} offen sc1
    v_cmp_gt_u32 vcc, {sNEED}, {JK}
    s_cbranch_vccz {fk}b
    s_sub_u32 {sBUD}, {sBUD}, 1
    s_cbranch_scc0 {fk}
    s_mov_b32 {sBUD}, 0
    s_branch {fk}b""")
    vp = {}
    def vq(n):
        for _ in range(n):
            i = len(vp); vp[i] = st.mf(sm('v', i & 1, i >> 1))
            if i & 1 and (i >> 1) + 4 < 9: st.add(vp[i], 'D', rdA((i >> 1) + 4))
        return len(st.m) - 1
    p = vq(2)
    e = epi(ACK, 'T')
    st.add(p, 'X', e[0], e[2], e[4], f'ds_write_b32 {QW}, v{ACK} offset:{KXM - QX}', e[1], e[3], e[5],
           lambda: a(f'ds_write_b32 {QW}, v{ACK + 1} offset:{KXM - QX + 64}', tok=tk))
    p = vq(1); st.add(p, 'D', f'buffer_store_dword v{ACK}, {QW}, {WS}, {sT3} offen sc1')
    p = vq(1); st.add(p, 'S', f's_lshr_b32 {sT2}, {sMW}, 2')
    p = vq(1); st.add(p, 'D', f'buffer_store_dword v{ACK + 1}, {QW}, {WS}, {sT3} offen offset:64 sc1')
    p = vq(1)
    S0, S1 = X, X + 4
    st.add(SPOS if SPOS is not None else p, 'S', lambda: stamp(a, 5))
    st.add(p, 'X', lambda: a.wait(tk), 's_barrier', f'ds_read_b128 {vr(ACK, 4)}, {KR}', f'ds_read_b128 {vr(ACK + 4, 4)}, {KR} offset:512',
           f'ds_read_b128 {vr(S0, 4)}, {QR} offset:{SX - QX}', f'ds_read_b128 {vr(S1, 4)}, {QR} offset:{SX - QX + 512}')
    P, PMa, PMb = ACK, ACK + 4, ACK + 6
    lk = ldKV(KX, sTMP)
    p = vq(1); st.add(p, 'S', f's_add_u32 {sT3}, {sT2}, {sKVM}')
    p = vq(1); st.add(p, 'S', lambda: a.need(JK)); st.add(p, 'V', f'v_cmp_gt_u32 vcc, {sNEED}, {JK}')
    def dbgst():
        a(f's_lshl_b32 {sTO}, {sL}, 5\ns_add_u32 {sTO}, {sTO}, {sH}\ns_lshl_b32 {sTO}, {sTO}, 2\ns_add_u32 {sTO}, {sTO}, {sW}\ns_lshl_b32 {sTO}, {sTO}, 6\ns_add_u32 {sTO}, {sTO}, {sS}\ns_lshl_b32 {sTO}, {sTO}, 6\ns_add_u32 {sTO}, {sTO}, {L.DBG:#x}')
        for i in range(10): a(f'v_writelane_b32 {TA}, s{32 + i}, {i}')
        a(f'v_lshlrev_b32 v{SC}, 1, {L2}\ns_mov_b64 exec, 0x3ff\nbuffer_store_dword {TA}, v{SC}, {WS}, {sTO} offen\ns_mov_b64 exec, -1')
    if DEBUG: st.add(p, 'X', dbgst)
    if TIMELINE: st.add(p, 'X', lambda: rts(a, SC, sS, 2))
    p = vq(1); st.add(p, 'S', f's_cbranch_vccnz {fk}', f'{fk}b:'); st.add(p, 'D', lk[0]); st.add(p, 'V', f'v_lshlrev_b32 {JK}, 2, {L2}')
    p = vq(OPT.get('v1', 3) - 1)
    p = st.mf(f'{MF32} {vr(SC, 4)}, {vr(ACK, 4)}, {vr(ACQ, 4)}, 0')
    st.add(p, 'D', lk[1])
    p = st.mf(f'{MF32} {vr(SC, 4)}, {vr(ACK + 4, 4)}, {vr(ACQ + 4, 4)}, {vr(SC, 4)}')
    EM, MX, TT = S1, S1 + 1, S1 + 2
    st.add(p, 'V', *[f'v_add_f32 v{S0 + r}, v{S0 + r}, v{S1 + r}' for r in range(4)])
    st.add(p, 'V', f'v_max3_f32 v{MX}, v{S0}, v{S0+1}, v{S0+2}', f'v_mov_b32 v{PMa + 1}, 0', f'v_mov_b32 v{PMb}, 0', f'v_add_u32 {TA}, {sOW}, {QR}')
    st.add(p, 'V', f'v_add_f32_dpp v{EM}, v{SC+2}, v{SC} row_ror:8 row_mask:0xf bank_mask:0x3', f'v_add_f32_dpp v{EM}, v{SC+1}, v{SC+3} row_ror:8 row_mask:0xf bank_mask:0xc',
           f'v_max3_f32 v{MX}, v{MX}, v{S0+3}, v{EM}')
    ON = SC
    p = vq(1); st.add(p, 'V', f'v_max_f32_dpp v{MX}, v{MX}, v{MX} row_ror:8 {DPPF}', f'v_mov_b32 v{TT}, v{MX}')
    p = vq(1); st.add(p, 'V', f'v_permlane16_swap_b32 v{TT}, v{MX}', f'v_max_f32 v{MX}, v{MX}, v{TT}', f'v_mov_b32 v{TT}, v{MX}')
    p = vq(1); st.add(p, 'V', f'v_permlane32_swap_b32 v{TT}, v{MX}', f'v_max_f32 v{MX}, v{MX}, v{TT}', f'v_mul_f32 v{MX}, {sC}, v{MX}')
    sv = list(range(S0, S0 + 4)) + [EM]
    st.add(p, 'V', *[f'v_fma_f32 v{r}, v{r}, {sC}, -v{MX}' for r in sv])
    rem = 18 - len(vp) - 2
    if rem > 0: p = vq(rem)
    st.add(p, 'V', *[f'v_exp_f32 v{r}, v{r}' for r in sv])
    st.add(p, 'V', f'v_cvt_pk_bf16_f32 v{P}, v{S0}, v{S0+1}', f'v_cvt_pk_bf16_f32 v{P+1}, v{S0+2}, v{S0+3}')
    p = vq(1); st.add(p, 'V', f'v_mov_b32_dpp v{P+2}, v{P} row_ror:8 {DPPF}', f'v_mov_b32_dpp v{P+3}, v{P+1} row_ror:8 {DPPF}')
    p = vq(1); st.add(p, 'V', f'v_mov_b32_dpp v{TT}, v{EM} row_ror:8 {DPPF}')
    assert len(vp) == 18
    O0, O1, SU = ACQ, ACQ + 4, S0
    p = st.mf(f'{MF32} {vr(O0, 4)}, {vr(VX, 4)}, {vr(P, 4)}, 0')
    st.add(p, 'V', f'v_mov_b64 {vr(ON, 2)}, s[96:97]', f'v_mov_b64 {vr(ON + 2, 2)}, s[96:97]')
    p = st.mf(f'{MF32} {vr(O1, 4)}, {vr(VX + 4, 4)}, {vr(P, 4)}, 0')
    st.add(p, 'V', f'v_cvt_pk_bf16_f32 v{PMa}, v{EM}, v{TT}', f'v_cvt_pk_bf16_f32 v{PMb+1}, v{EM}, v{TT}')
    p = st.mf(f'{MF32} {vr(SU, 4)}, {vr(ON, 4)}, {vr(P, 4)}, 0')
    f = lf(('o', 0, 0)); st.add(p, 'D', f[0])
    st.add(p, 'V', *epi(Z, 'R'))
    p = st.mf(f'{MF16} {vr(SU, 4)}, {vr(ON, 2)}, {vr(PMa, 2)}, {vr(SU, 4)}'); st.add(p, 'D', f[1])
    p = st.mf(f'{MF16} {vr(O0, 4)}, {vr(Z, 2)}, {vr(PMa, 2)}, {vr(O0, 4)}')
    st.add(p, 'D', f'buffer_store_dwordx2 {vr(Z, 2)}, {JK}, {WS}, {sT3} offen offset:{L.KVM_V} sc1'); st.add(p, 'V', z2(24))
    p = st.mf(f'{MF16} {vr(O1, 4)}, {vr(Z, 2)}, {vr(PMb, 2)}, {vr(O1, 4)}')
    st.add(p, 'D', *lf(('o', 1, 0)))
    for i_, p_ in zip((1, 3, 4, 5), PROF): st.add(p_, 'S', lambda i_=i_: stamp(a, i_, True))
    st.emit()
    stamp(a, 1)
    oacc = {0: 24, 1: 28, 2: 32, 3: 36, 4: X, 5: X + 4, 6: ACQ + 4, 7: ACQ, 8: SC}
    a(z2(26))
    a(f'v_rcp_f32 v{SU}, v{SU}')
    a(z2(28)); a(z2(30))
    for r in range(0, 8, 2): a(f'v_pk_mul_f32 {vr(O0 + r, 2)}, {vr(O0 + r, 2)}, {vr(SU, 2)} op_sel_hi:[1,0]')
    a(f's_mov_b64 exec, {LO8}')
    for r in range(4): a(f'v_cvt_pk_bf16_f32 v{O0 + r}, v{O0 + 2 * r}, v{O0 + 2 * r + 1}')
    a(f'ds_write_b128 {TA}, {vr(O0, 4)}\ns_mov_b64 exec, -1')
    for r in list(range(32, 40, 2)) + list(range(X, X + 8, 2)) + [SC, SC + 2]: a(z2(r))
    a(f'v_and_b32 {TA}, 0x60, {L2}\nv_add_lshl_u32 {TA}, {TA}, {L2}, 1')
    a('s_waitcnt lgkmcnt(0)\ns_barrier')
    a(f'ds_read_b128 {vr(Z, 4)}, {OR}\nds_read_b128 {vr(Z + 4, 4)}, {OR} offset:1088')
    for r in range(ACQ, ACQ + 8, 2): a(z2(r))
    a(f's_add_u32 {sTMP}, {sM0}, {sPO}\ns_add_u32 {sT3}, {sTMP}, {sT2}\ns_add_u32 {sT2}, {sTMP}, {sP8}\ns_add_u32 {sTMP}, {sT3}, 4096')
    a(f's_add_u32 {sRM}, {sM0}, {sUR}')
    for i in range(4): a(f's_add_u32 {sR[i]}, {sRM}, {(8 * i + 1) * 9216}')
    stamp(a, 2)
    if DEBUG: a('s_memrealtime s[100:101]')
    oseq = [(0, 0), (1, 0), (0, 1), (1, 1), (8, 0), (8, 1), (2, 0), (3, 0), (2, 1), (3, 1), (4, 0), (5, 0), (4, 1), (5, 1), (6, 0), (7, 0), (6, 1), (7, 1)]
    st = Stream(a)
    for T, k in oseq: st.mf(f'{SMF} {vr(oacc[T], 4)}, {vr(Z + 4 * k, 4)}, {wop(("o", T, k))}, {IDX}')
    f = lf(('o', 2, 0)) + lf(('o', 3, 0))
    for i in range(4): st.add(i, 'D', f[i])
    f = lf(('o', 4, 1)) + lf(('o', 5, 1)) + lf(('o', 6, 1)) + lf(('o', 7, 1))
    for i in range(8): st.add(6 + i, 'D', f[i])
    def oepi(p, pk=False):
        A, B = oacc[2 * p], oacc[2 * p + 1]
        if pk: ad = [f'v_pk_add_f32 {vr(A, 2)}, {vr(A, 2)}, {vr(A + 2, 2)}', f'v_pk_add_f32 {vr(B, 2)}, {vr(B, 2)}, {vr(B + 2, 2)}']
        else: ad = [f'v_add_f32 v{A}, v{A}, v{A+2}', f'v_add_f32 v{A+1}, v{A+1}, v{A+3}', f'v_add_f32 v{B}, v{B}, v{B+2}', f'v_add_f32 v{B+1}, v{B+1}, v{B+3}']
        return ad + [f'v_cvt_pk_bf16_f32 v{A}, v{A}, v{B}', f'v_cvt_pk_bf16_f32 v{A + 1}, v{A+1}, v{B+1}', f'v_and_or_b32 v{A}, v{A}, -2, {sRA}']
    pst = lambda p: f'buffer_store_dwordx2 {vr(oacc[2 * p], 2)}, {JK}, {WS}, {[sT3, sTMP][p >> 1]} offen offset:{(p & 1) * 2048}'
    for x, p in zip(oepi(0), [5, 5, 6, 6, 7, 7, 7]): st.add(p, 'V', x)
    st.add(8, 'S', pst(0))
    st.add(8, 'V', f'v_add_f32 v{SC}, v{SC}, v{SC+2}'); st.add(9, 'V', f'v_add_f32 v{SC+1}, v{SC+1}, v{SC+3}'); st.add(10, 'V', f'v_cvt_pk_bf16_f32 v{SC}, v{SC}, v{SC+1}', f'v_and_or_b32 v{SC}, v{SC}, -2, {sRA}')
    st.add(11, 'S', f'buffer_store_dword v{SC}, {TA}, {WS}, {sT2} offen')
    for x, p in zip(oepi(1), [11, 11, 12, 12, 13, 13, 13]): st.add(p, 'V', x)
    st.add(14, 'D', pst(1))
    for x, p in zip(oepi(2), [15, 15, 16, 16, 17, 17, 17]): st.add(p, 'V', x)
    st.add(17, 'X', pst(2))
    st.emit()
    for x in oepi(3, True): a(x)
    a(pst(3))
    stamp(a, 3)
    a(f's_add_u32 {sS}, {sS}, 1\ns_cmp_eq_u32 {sS}, {NSTEPS}\ns_cbranch_scc1 {XIT}')
    a(f's_add_u32 {sKV}, {sKV}, {0 if FIXKV else 16384}\ns_add_u32 {sKVM}, {sKVM}, 4096')
    i_s1 = len(a.ins)
    nr, pb = a.lab('nr'), a.lab('pb')
    a(f's_cmp_eq_u32 {sU}, -1\ns_cbranch_scc1 {nr}')
    a(f's_cmp_lg_u32 {sW}, 1\ns_cbranch_scc1 {nr}e')
    for _ in range(OPT.get('dA', 12)): a('s_nop 3')
    a(f'{nr}e:')
    SET = [24, X]
    def ashot(k):
        for i in range(4): a(f'buffer_load_dwordx4 {vr(SET[k] + 4 * i, 4)}, {RR}, {WS}, {sR[i]} offen sc1')
    def ared(k):
        b = SET[k]
        for i in range(4):
            a(f'{MF32} v[44:47], v[40:43], {vr(b + 4 * i, 4)}, {"0" if i == 0 else "v[44:47]"}')
            a(f'v_bitop3_b32 v{SC + i % 2 + (i > 1)}, v{b + 4 * i}, v{b + 4 * i + 2}, {sRA} bitop3:0x7e')
            if i == 1: a(f'v_or_b32 v{SC}, v{SC}, v{SC + 1}')
        a(f'v_or3_b32 v{SC}, v{SC}, v{SC + 1}, v{SC + 2}\nv_and_b32 v{SC}, 1, v{SC}\nv_cmp_ne_u32 vcc, 0, v{SC}')
    ashot(0)
    a(f'v_mov_b32 v44, 0x3f80\nv_mov_b32 v45, 0x3f800000\nv_cndmask_b32 v44, v44, v45, {ODD}')
    for p in range(4): a(f'v_cndmask_b32 v{40 + p}, 0, v44, s[{SM + 2 * p}:{SM + 2 * p + 1}]')
    for k in (pre[0], pre[3]):
        for x in lf(k): a(x)
    for _ in range(OPT.get('dT', 12)): a('s_nop 3')
    ashot(1)
    lp = a.lab('ha')
    a(f'{lp}:')
    ared(0)
    a(f's_cbranch_vccnz {lp}r\n{pb}:')
    a(f'''s_mov_b64 exec, {L32}
    v_add_f32_dpp v{SC}, v44, v44 row_ror:8 row_mask:0xf bank_mask:0x3
    v_add_f32_dpp v{SC + 1}, v45, v45 row_ror:8 row_mask:0xf bank_mask:0x3
    v_add_f32_dpp v{SC}, v46, v46 row_ror:8 row_mask:0xf bank_mask:0xc
    v_add_f32_dpp v{SC + 1}, v47, v47 row_ror:8 row_mask:0xf bank_mask:0xc
    v_cvt_pk_bf16_f32 v44, v{SC}, v{SC + 1}
    buffer_store_dword v44, {RW}, {WS}, {sM1} offen
    s_mov_b64 exec, -1''')
    def aretry():
        a(f'{lp}r:')
        ashot(0)
        a(f's_sub_u32 {sBUD}, {sBUD}, 1\ns_cselect_b32 {sBUD}, 0, {sBUD}')
        ared(1)
        a(f's_cbranch_vccz {pb}')
        ashot(1)
        a(f's_sub_u32 {sBUD}, {sBUD}, 1\ns_cbranch_scc0 {lp}\ns_mov_b32 {sBUD}, 0\ns_branch {pb}')
    ool.append(aretry)
    a(f's_branch {nr}j')
    a(f'{nr}:')
    for k in (pre[0], pre[3]):
        for x in lf(k): a(x)
    a(f'{nr}j:')
    if OPT.get('nohop'):
        keep = []
        for i_, x in enumerate(a.ins):
            mn = getattr(x, 'mn', '')
            if i_loop <= i_ < i_s0:
                if x.kind == 'vmem' or mn == 's_nop': continue
            elif i_s0 <= i_ < i_s1:
                if OPT.get('novm') and x.kind == 'vmem': continue
                if OPT.get('nobr') and mn == 's_cbranch_vccnz': continue
                if OPT.get('nobar') and mn == 's_barrier': continue
                if OPT.get('nods') and mn == 'ds_read_b128' and (LW + ' ' in x.text or AR + ' ' in x.text): continue
                if OPT.get('nodw') and mn.startswith('ds_write'): continue
                if OPT.get('nova') and x.kind == 'valu': continue
            elif i_ >= i_s1 and not x.label and x.kind != 'ds': continue
            keep.append(x)
        a.ins = keep
    stamp(a, 4)
    if DEBUG:
        a('s_waitcnt lgkmcnt(0)')
        a(f's_mov_b32 s78, {sBUD}')
        for i in range(8): a(f's_mov_b32 s{32 + i}, s{64 + 2 * i}')
        a('s_mov_b32 s40, s98\ns_mov_b32 s41, s100')
    a(f's_mov_b32 {sTMP}, {sM0}\ns_mov_b32 {sM0}, {sM1}\ns_mov_b32 {sM1}, {sM2}\ns_mov_b32 {sM2}, {sTMP}')
    a(f's_cmp_eq_u32 {sM0}, {sRB}\ns_cselect_b32 {sTMP}, 1, 0\ns_xor_b32 {sRA}, {sRA}, {sTMP}')
    if LIGHT:
        a(f's_cmp_lg_u32 {sS}, 8\ns_cbranch_scc1 {LOOP}\ns_memtime s[98:99]\ns_mov_b32 s46, {sBUD}')
    a(f's_branch {LOOP}')
    a(f'{rd}:\ns_sub_u32 {sBUD}, {sBUD}, 64\ns_cbranch_scc0 {REDO}\ns_mov_b32 {sBUD}, 0\ns_branch {rd}b')
    for x in ool: x() if callable(x) else a(x)
    a(f'{XIT}:')
    if LIGHT:
        a(f's_memtime s[100:101]\ns_waitcnt lgkmcnt(0)\ns_sub_u32 s100, s100, s98\ns_sub_u32 s46, s46, {sBUD}\nv_mov_b32 v24, s100\nv_mov_b32 v25, s46')
        a(f's_lshl_b32 {sTMP}, {sL}, 5\ns_add_u32 {sTMP}, {sTMP}, {sH}\ns_lshl_b32 {sTMP}, {sTMP}, 2\ns_add_u32 {sTMP}, {sTMP}, {sW}\ns_lshl_b32 {sTMP}, {sTMP}, 3\ns_add_u32 {sTMP}, {sTMP}, {L.DBG:#x}')
        a(f's_mov_b64 exec, 1\nbuffer_store_dwordx2 v[24:25], {L2}, {WS}, {sTMP} offen')
    a('s_endpgm')

def gen_qkv(a):
    HB = 0; PK = 2 * 36864; PKS = 24576; KM = PK + 3 * PKS
    vA, vHD, vKM, vHR = 'v0', 'v1', 'v2', 'v3'
    sL, sH, sLB, sTMP, sB0, sPAR = 's11', 's12', 's13', 's14', 's15', 's16'
    sJ, sHS, sKV, sKVM, sO, sFKV, sFO, sARM, sNEED, sT2, sPW, sPR, sLBH, sC, sJA, sQO, sVO, sD, sFH, sW10, sDM, sFS, sFM = ['s%d' % i for i in range(52, 64)] + ['s%d' % i for i in range(17, 28)]
    MK = 64
    a('qkv:')
    a(f"""s_sub_u32 {sH}, {sX}, 2
    s_lshl_b32 {sH}, {sH}, 3
    s_and_b32 {sTMP}, {sT}, 7
    s_add_u32 {sH}, {sH}, {sTMP}
    s_lshr_b32 {sL}, {sT}, 4
    s_bfe_u32 {sPAR}, {sT}, 0x10003
    s_mul_i32 {sLB}, {sW}, 36864""")
    vTR, vo1, t0 = 'v20', 'v21', 'v24'
    mk_vTR(a, vTR, t0, sLB)
    bits(a, vo1, t0, [(0, 2, 4), (2, 4, 13)])
    a(f's_lshl_b32 {sB0}, {sH}, 8\ns_lshl_b32 {sTMP}, {sW}, 6\ns_add_u32 {sB0}, {sB0}, {sTMP}')
    pool = [('a', 8 * i) for i in range(32)] + [('v', 80 + 8 * i) for i in range(22)]
    W = {}; units = []
    for m in 'kvq':
        for kap in range(9):
            d = [pool.pop(0), pool.pop(0)]
            for T in range(2):
                for hh in range(2): W[(m, T, 2 * kap + hh)] = (d[T][0], d[T][1] + 4 * hh)
            units.append(({'q': WQ, 'k': WK, 'v': WV}[m], vo1, sB0, [(64 * kap + 16 * q) * 8192 for q in range(4)], d[0], d[1]))
    load_units(a, units, vTR, None, sLB, sTMP, None)
    initwait(a)
    rts(a, 30, None, 1)
    wf = lambda m, T, k: vr(W[(m, T, k)][1], 4, W[(m, T, k)][0])
    a(f's_and_b32 {sTMP}, {sW}, 1\ns_lshl_b32 {sTMP}, {sTMP}, 4\nv_and_b32 v24, 15, v0\nv_add_u32 v24, {sTMP}, v24\nv_lshrrev_b32 v25, 4, v0\nv_lshlrev_b32 v25, 2, v25\nv_sub_u32 v24, v24, v25')
    for kt in range(2):
        for r in range(4):
            a(f'v_cmp_le_i32 s[{MK + 8 * kt + 2 * r}:{MK + 8 * kt + 2 * r + 1}], {16 * kt + r}, v24')
    a(f'v_lshrrev_b32 {vHD}, 2, v0\nv_mul_u32_u24 {vHD}, 1152, {vHD}\nv_and_b32 v24, 3, v0\nv_lshlrev_b32 v24, 4, v24\nv_and_b32 v25, 32, v0\nv_xor_b32 v24, v24, v25\nv_add_u32 {vHD}, {vHD}, v24')
    bits(a, vHR, t0, [(0, 4, 6), (4, 2, 4)])
    a(f'v_and_b32 v24, 8, v0\nv_lshlrev_b32 v24, 2, v24\nv_xor_b32 {vHR}, {vHR}, v24')
    bits(a, vKM, t0, [(4, 2, 4), (2, 2, 7), (0, 1, 6)], KM)
    a(f'v_lshlrev_b32 {vA}, 4, v0')
    a(f's_mov_b32 {sC}, {CSC:#x}\ns_mov_b32 {sJ}, 0\ns_mov_b32 {sJA}, 0\ns_mov_b32 {sD}, {OPT.get("D", 2)}\ns_mov_b32 {sDM}, 0\ns_lshl_b32 {sW10}, {sW}, 10')
    a(f"""s_mul_i32 {sHS}, {sL}, {L.H2 - L.H1:#x}
    s_add_u32 {sHS}, {sHS}, {L.H1:#x}
    s_mul_i32 {sTMP}, {sPAR}, 36864
    s_add_u32 {sHS}, {sHS}, {sTMP}
    s_and_b32 {sT2}, {sW}, 1
    s_mul_i32 {sTMP}, {sT2}, 18432
    s_add_u32 {sHS}, {sHS}, {sTMP}
    s_lshl_b32 {sLBH}, {sT2}, 10
    s_lshl_b32 {sQO}, {sT2}, 12
    s_lshr_b32 {sT2}, {sW}, 1
    s_mul_i32 {sTMP}, {sT2}, 576
    s_add_u32 {sHS}, {sHS}, {sTMP}
    s_mul_i32 {sTMP}, {sT2}, 18432
    s_add_u32 {sLBH}, {sLBH}, {sTMP}
    s_lshl_b32 {sVO}, {sT2}, 12""")
    a(f"""s_lshl_b32 {sT2}, {sL}, 5
    s_add_u32 {sT2}, {sT2}, {sH}
    s_lshl_b32 {sTMP}, {sT2}, 6
    s_add_u32 {sTMP}, {sTMP}, {sPAR}
    s_lshl_b32 {sKV}, {sTMP}, 14
    s_add_u32 {sKV}, {sKV}, {L.KV:#x}
    s_lshl_b32 {sKVM}, {sTMP}, 12
    s_add_u32 {sKVM}, {sKVM}, {L.KVM:#x}
    s_add_u32 {sKVM}, {sKVM}, {sW10}
    s_mov_b32 {sARM}, {sKVM}
    s_lshl_b32 {sO}, {sTMP}, 13
    s_add_u32 {sO}, {sO}, {L.O:#x}
    s_lshl_b32 {sTMP}, {sT2}, 1
    s_add_u32 {sTMP}, {sTMP}, {sPAR}
    s_lshl_b32 {sFKV}, {sTMP}, 6
    s_add_u32 {sFKV}, {sFKV}, {sW}
    s_lshl_b32 {sFKV}, {sFKV}, 1
    s_add_u32 {sFKV}, {sFKV}, {L.FKV:#x}
    s_lshl_b32 {sTMP}, {sL}, 1
    s_add_u32 {sTMP}, {sTMP}, {sPAR}
    s_lshl_b32 {sTMP}, {sTMP}, 5
    s_add_u32 {sTMP}, {sTMP}, {sH}
    s_lshl_b32 {sFO}, {sTMP}, 5
    s_lshl_b32 {sFO}, {sFO}, 2
    s_add_u32 {sFO}, {sFO}, {L.FO:#x}
    s_lshl_b32 {sFH}, {sPAR}, 1
    s_and_b32 {sTMP}, {sW}, 1
    s_add_u32 {sFH}, {sFH}, {sTMP}
    s_cmp_eq_u32 {sL}, 0
    s_cselect_b32 {sFS}, 2048, 0
    s_cselect_b32 {sFM}, 2, 4
    s_cselect_b32 {sTMP}, 9, 11
    s_cselect_b32 {sT2}, 0, 0x4000
    s_lshl_b32 {sFH}, {sFH}, {sTMP}
    s_add_u32 {sFH}, {sFH}, {sT2}
    s_add_u32 {sFH}, {sFH}, {L.FH1:#x}
    s_cmp_eq_u32 {sW}, 0
    s_cselect_b32 s80, 1, 0
    s_mov_b32 s81, 0
    s_mov_b32 {sPW}, {PK}
    s_mov_b32 {sPR}, {PK}""")
    a(f's_add_u32 {sO}, {sO}, {sVO}\ns_lshr_b32 {sTMP}, {sQO}, 2\ns_add_u32 {sO}, {sO}, {sTMP}')
    a('s_barrier')
    LOOP, NOH, NOA, NOP_, NH2 = [a.lab(x) for x in ('ql', 'qnh', 'qna', 'qnp', 'qn2')]
    th, to = a.tok('h'), a.tok('o')
    def hdma():
        for i in range(9):
            a(f's_add_u32 m0, {sLBH}, {HB + i * 1984}')
            a(f'buffer_load_dwordx4 {vHD}, {WS}, {sHS} offen offset:{i * 64} sc1 lds', tok=th)
        a(f's_add_u32 {sHS}, {sHS}, {2 * 36864}\ns_add_u32 {sB0}, {sFH}, {sFS}\ns_and_b32 {sB0}, {sB0}, 0x3fff\ns_andn2_b32 {sFH}, {sFH}, 0x3fff\ns_or_b32 {sFH}, {sFH}, {sB0}')
        a(f's_add_u32 {sLBH}, {sLBH}, 36864\ns_cmp_ge_u32 {sLBH}, {2 * 36864}\ns_cselect_b32 {sB0}, {2 * 36864}, 0\ns_sub_u32 {sLBH}, {sLBH}, {sB0}')
    def flag(vt, val, so, short=False):
        a(f'v_mov_b32 v{vt}, {val}\ns_mov_b64 exec, 1\nbuffer_store_{"short" if short else "dword"} v{vt}, {vA}, {WS}, {so} offen sc1\ns_mov_b64 exec, -1')
    a(f'{LOOP}:')
    a(f's_cmp_lt_u32 {sJ}, {sD}\ns_cbranch_scc1 {NOA}')
    a(f'v_add_u32 v4, {sPR}, {vA}\nv_add_u32 v5, {sQO}, v4')
    for k in range(4): a(f'ds_read_b128 {vr(24 + 4 * k, 4)}, v5 offset:{k * 1024}')
    for k in range(8): a(f'ds_read_b128 {vr(40 + 4 * k, 4)}, v4 offset:{8192 + k * 1024}')
    a(f'v_add_u32 v5, {sVO}, v4\ns_add_u32 {sTMP}, {sW10}, {KM}\nv_add_u32 v6, {sTMP}, {vA}')
    a(f's_lshr_b32 {sTMP}, {sVO}, 2\ns_add_u32 {sTMP}, {sTMP}, {KM + 2048}\nv_lshrrev_b32 v7, 1, {vA}\nv_add_u32 v7, {sTMP}, v7')
    for kt in range(2):
        for k in range(4):
            a(f'{MF32} {vr(72 + 4 * kt, 4)}, {vr(40 + 16 * kt + 4 * k, 4)}, {vr(24 + 4 * k, 4)}, {"0" if k == 0 else vr(72 + 4 * kt, 4)}')
    for k in range(4): a(f'ds_read_b128 {vr(56 + 4 * k, 4)}, v5 offset:{16384 + k * 1024}')
    a('v_mov_b32 v44, 0xff800000')
    for r in range(4): a(f'v_mov_b32 v{48 + r}, 0x3f803f80')
    for i in range(8): a(f'v_cndmask_b32 v{72 + i}, v44, v{72 + i}, s[{MK + 2 * i}:{MK + 2 * i + 1}]')
    a('v_max3_f32 v45, v72, v73, v74\nv_max3_f32 v45, v45, v75, v76\nv_max3_f32 v45, v45, v77, v78\nv_max_f32 v45, v45, v79')
    lp, dn = a.lab('mp'), a.lab('md')
    a(f"""{lp}:
    v_max3_u32 v46, v12, v13, v14
    v_max_u32 v46, v46, v15
    v_cmp_eq_u32 vcc, -1, v46
    s_cbranch_vccz {dn}
    s_sleep {OPT.get('ks', 3)}
    buffer_load_dwordx4 v[12:15], {vA}, {WS}, {sKVM} offen sc1
    s_sub_u32 {sBUD}, {sBUD}, 1
    s_cbranch_scc0 {lp}
    s_mov_b32 {sBUD}, 0
    {dn}:
    ds_write_b128 v6, v[12:15]
    s_waitcnt lgkmcnt(0)
    s_barrier""")
    for k in range(4): a(f'ds_read_b128 {vr(8 + 4 * k, 4)}, {vKM} offset:{k * 512}')
    a('ds_read_b64 v[4:5], v7\nds_read_b64 v[6:7], v7 offset:512')
    for k in range(4):
        a(f'{MF32} v[40:43], {vr(8 + 4 * k, 4)}, {vr(24 + 4 * k, 4)}, {"0" if k == 0 else "v[40:43]"}')
    a('v_max3_f32 v45, v45, v40, v41')
    xreduce(a, 'v_max_f32', 'v45', 'v46')
    a(f'v_mul_f32 v45, {sC}, v45')
    sv = list(range(72, 80)) + [40, 41]
    for r in sv: a(f'v_fma_f32 v{r}, v{r}, {sC}, -v45')
    for r in sv: a(f'v_exp_f32 v{r}, v{r}')
    for i in range(4): a(f'v_cvt_pk_bf16_f32 v{8 + i}, v{72 + 2 * i}, v{73 + 2 * i}')
    a('v_cvt_pk_bf16_f32 v12, v40, v41\nv_mov_b32 v13, 0\nv_mov_b32 v14, 0\nv_cvt_pk_bf16_f32 v15, v40, v41')
    a(f'{MF32} v[52:55], v[48:51], v[8:11], 0')
    for e in range(4): a(f'{MF32} {vr(24 + 4 * e, 4)}, {vr(56 + 4 * e, 4)}, v[8:11], 0')
    a(f'{MF16} v[52:55], v[48:49], v[12:13], v[52:55]')
    for e in range(4): a(f'{MF16} {vr(24 + 4 * e, 4)}, {vr(4 + 2 * (e >> 1), 2)}, {vr(12 + 2 * (e & 1), 2)}, {vr(24 + 4 * e, 4)}')
    a(f's_add_u32 {sJA}, {sJA}, 1\ns_add_u32 {sKVM}, {sKVM}, 8192')
    a(f's_add_u32 {sPR}, {sPR}, {PKS}\ns_cmp_eq_u32 {sPR}, {PK + 3 * PKS}\ns_cselect_b32 {sPR}, {PK}, {sPR}')
    a('v_rcp_f32 v52, v52')
    for r in range(0, 16, 2): a(f'v_pk_mul_f32 {vr(24 + r, 2)}, {vr(24 + r, 2)}, v[52:53] op_sel_hi:[1,0]')
    for r in range(8): a(f'v_cvt_pk_bf16_f32 v{24 + r}, v{24 + 2 * r}, v{25 + 2 * r}')
    a(f'buffer_store_dwordx4 v[24:27], {vA}, {WS}, {sO} offen sc1\nbuffer_store_dwordx4 v[28:31], {vA}, {WS}, {sO} offen offset:2048 sc1', tok=to)
    a(f's_add_u32 {sO}, {sO}, 16384\nv_mov_b32 v12, -1')
    rts(a, 8, sJA, 1)
    a(f'{NOA}:')
    sk = a.lab('fo')
    a(f's_lshr_b32 {sTMP}, {sJ}, 5\ns_or_b32 {sTMP}, {sTMP}, {sL}\ns_cbranch_scc0 {sk}')
    a(f'v_mov_b32 v8, {sJA}\ns_waitcnt vmcnt(0)\ns_barrier\ns_mov_b64 exec, s[80:81]\nbuffer_store_dword v8, {vA}, {WS}, {sFO} offen sc1\ns_mov_b64 exec, -1')
    a(f's_cmp_ge_u32 {sJ}, 32\ns_cbranch_scc1 {NOP_}')
    a(f'{sk}:\ns_cmp_eq_u32 {sDM}, 1\ns_cbranch_scc1 {NH2}')
    a(f'v_bfe_u32 v9, {vA}, 4, {sFM}\nv_lshlrev_b32 v9, 7, v9\ns_add_u32 {sNEED}, {sJ}, 1')
    poll_flag(a, 'v8', 'v9', sFH, sNEED, sleep=3)
    hdma()
    rts(a, 8, sJ, 70)
    a(f's_waitcnt vmcnt(0)\n{NH2}:')
    rts(a, 8, sJ, 71)
    tkv = a.tok('kv')
    a('v_mov_b64 v[4:5], -1\nv_mov_b64 v[6:7], -1')
    a(f's_mov_b32 {sDM}, 0\ns_add_u32 {sNEED}, {sJ}, 2\ns_barrier')
    AK, AV, AQ_, HR = 8, 24, 40, 56
    hs = lambda k, rt: vr(HR + 8 * (k % 3) + 4 * rt, 4)
    rdH = lambda k, rt: f'ds_read_b128 {hs(k, rt)}, {vHR} offset:{HB + ((k % 18) * 2 + rt) * 1024}'
    st = Stream(a)
    st.add(-1, 'D', *[rdH(k, rt) for k in range(3) for rt in range(2)])
    for k in range(18):
        for rt in range(2):
            for T in range(2):
                d = vr(AK + 8 * rt + 4 * T, 4)
                st.mf(f'{MF32} {d}, {wf("k", T, k)}, {hs(k, rt)}, {"0" if k == 0 else d}')
            for T in range(2):
                d = vr(AV + 8 * T + 4 * rt, 4)
                p = st.mf(f'{MF32} {d}, {hs(k, rt)}, {wf("v", T, k)}, {"0" if k == 0 else d}')
            st.add(p, 'D', rdH(k + 3, rt))
    for k in range(18):
        for rt in range(2):
            for T in range(2):
                d = vr(AQ_ + 8 * rt + 4 * T, 4)
                p = st.mf(f'{MF32} {d}, {wf("q", T, k)}, {hs(k, rt)}, {"0" if k == 0 else d}')
            if k + 3 < 18: st.add(p, 'D', rdH(k + 3, rt))
    st.add(44, 'V', f'v_mov_b32 v{AQ_}, {sJA}')
    st.add(45, 'X', lambda: a.wait(to), 's_barrier', 's_mov_b64 exec, s[80:81]', f'buffer_store_dword v{AQ_}, {vA}, {WS}, {sFO} offen sc1', 's_mov_b64 exec, -1')
    st.add(49, 'D', f'buffer_store_dwordx4 v[4:7], {vA}, {WS}, {sARM} offen sc1')
    st.add(53, 'S', f's_add_u32 {sARM}, {sARM}, 8192')
    st.add(136, 'S', f's_add_u32 {sT2}, {sW10}, {sPW}'); st.add(137, 'V', f'v_add_u32 v4, {sT2}, {vA}')
    st.add(138, 'S', f's_add_u32 {sT2}, {sT2}, {sW10}'); st.add(140, 'V', f'v_add_u32 v5, {sT2}, {vA}')
    st.add(141, 'S', f's_add_u32 {sT2}, {sW10}, {sKV}'); st.add(142, 'S', f's_add_u32 {sB0}, {sT2}, 4096')
    st.add(144, 'S', f's_add_u32 {sTMP}, {sB0}, {sW10}'); st.add(146, 'S', f's_add_u32 {sTMP}, {sTMP}, 4096')
    pos = 146
    for b in range(4):
        base = AK + 8 * b
        for r in range(4): st.add(pos + (r >> 1) * 2, 'V', f'v_cvt_pk_bf16_f32 v{base + r}, v{base + 2 * r}, v{base + 2 * r + 1}')
        if b < 2:
            st.add(pos + 4, 'D', lambda base=base, b=b: a(f'buffer_store_dwordx4 {vr(base, 4)}, {vA}, {WS}, {[sT2, sB0][b]} offen sc1', tok=tkv))
            st.add(pos + 24, 'D', f'ds_write_b128 v4, {vr(base, 4)} offset:{8192 + b * 4096}')
        else:
            st.add(pos + 4, 'D', lambda base=base, b=b: a(f'buffer_store_dwordx4 {vr(base, 4)}, {vA}, {WS}, {sTMP} offen offset:{(b - 2) * 1024} sc1', tok=tkv))
            st.add(pos + 24, 'D', f'ds_write_b128 v5, {vr(base, 4)} offset:{16384 + (b - 2) * 1024}')
        pos += 6
    st.add(210, 'S', f's_add_u32 {sT2}, {sJ}, 1')
    pf = a.lab('pf')
    st.add(56, 'V', f'v_bfe_u32 v7, {vA}, 4, {sFM}', 'v_lshlrev_b32 v7, 7, v7'); st.add(57, 'D', f'buffer_load_dword v7, v7, {WS}, {sFH} offen sc1')
    st.add(112, 'S', lambda: a.need('v7')); st.add(112, 'V', f'v_cmp_gt_u32 vcc, {sNEED}, v7')
    st.add(114, 'S', f's_cbranch_vccz {pf}', f'{pf}b:')
    st.add(196, 'D', f'buffer_load_dwordx4 v[12:15], {vA}, {WS}, {sKVM} offen sc1')
    st.emit()
    a.wait(tkv)
    flag(6, sT2, sFKV, True)
    for b in range(2):
        base = AQ_ + 8 * b
        for r in range(4): a(f'v_cvt_pk_bf16_f32 v{base + r}, v{base + 2 * r}, v{base + 2 * r + 1}')
        a(f'ds_write_b128 v4, {vr(base, 4)} offset:{b * 4096}')
    rts(a, 8, sJ, 2)
    a(f's_add_u32 {sKV}, {sKV}, 32768\ns_and_b32 {sTMP}, {sJ}, 1\ns_mul_i32 {sTMP}, {sTMP}, {-2 * 36864}\ns_add_u32 {sTMP}, {sTMP}, 36864\nv_add_u32 {vHR}, {sTMP}, {vHR}')
    a(f's_add_u32 {sPW}, {sPW}, {PKS}\ns_cmp_eq_u32 {sPW}, {PK + 3 * PKS}\ns_cselect_b32 {sPW}, {PK}, {sPW}')
    a(f'{NOP_}:\ns_waitcnt lgkmcnt(0)\ns_barrier')
    a(f's_add_u32 {sJ}, {sJ}, 1\ns_cmp_lt_u32 {sJA}, 32\ns_cbranch_scc1 {LOOP}')
    a(f's_endpgm\n{pf}:\ns_cmp_ge_u32 {sJ}, 31\ns_cbranch_scc1 {pf}b')
    hdma()
    a(f's_mov_b32 {sDM}, 1\ns_branch {pf}b')

def gen_op(a):
    vA, vST, TA, vB = 'v0', 'v1', 'v2', 'v3'
    sL, sKG, sLB, sTMP, sB0, sCG = 's11', 's12', 's13', 's14', 's15', 's16'
    sS, sO, sFO, sFP, sPP, sT2, sBUF, sPAR, sT3, sT4, sFR, sPX = ['s%d' % i for i in range(52, 64)]
    a('op:')
    a(f"""s_sub_u32 {sPAR}, {sX}, 6
    s_cmp_ge_u32 {sT}, 12
    s_cselect_b32 {sL}, 1, 0
    s_mul_i32 {sTMP}, {sL}, 12
    s_sub_u32 {sT2}, {sT}, {sTMP}
    s_mul_i32 {sKG}, {sT2}, 43
    s_lshr_b32 {sKG}, {sKG}, 7
    s_mul_i32 {sTMP}, {sKG}, 3
    s_sub_u32 {sCG}, {sT2}, {sTMP}
    s_mul_i32 {sLB}, {sW}, 36864""")
    vTR, vo1, t0 = 'v20', 'v21', 'v24'
    mk_vTR(a, vTR, t0, sLB)
    bits(a, vo1, t0, [(4, 1, 4), (5, 1, 2), (2, 2, 0)])
    a(f'v_mul_u32_u24 {vo1}, 1152, {vo1}\nv_and_b32 {t0}, 3, v0\nv_lshl_add_u32 {vo1}, {t0}, 4, {vo1}')
    a(f's_mul_i32 {sB0}, {sKG}, {1024 * 1152}\ns_mul_i32 {sTMP}, {sCG}, 384\ns_add_u32 {sB0}, {sB0}, {sTMP}\ns_mul_i32 {sTMP}, {sW}, 96\ns_add_u32 {sB0}, {sB0}, {sTMP}')
    pool = [('a', 8 * i) for i in range(32)] + [('v', 128 + 8 * i) for i in range(16)]
    W = {}; units = []
    for k64 in range(16):
        for pr in range(2):
            d = []
            for T in (2 * pr, 2 * pr + 1):
                if T == 3: d.append(None); continue
                x = pool.pop(0); d.append(x)
                for hh in range(2): W[(T, 2 * k64 + hh)] = vr(x[1] + 4 * hh, 4, x[0])
            units.append((WO, vo1, sB0, [(64 * k64 + 32 * (q >> 1) + 8 * (q & 1)) * 1152 + 64 * pr for q in range(4)], d[0], d[1]))
    load_units(a, units, vTR, None, sLB, sTMP, None)
    initwait(a)
    rts(a, 30, None, 1)
    a(f'v_lshrrev_b32 {vST}, 4, v0\nv_mul_u32_u24 {vST}, 3072, {vST}\nv_and_b32 v24, 15, v0\nv_lshl_add_u32 {vST}, v24, 2, {vST}')
    bits(a, TA, t0, [(5, 1, 9)])
    a(f'v_lshlrev_b32 {vA}, 4, v0')
    a(f"""s_mov_b32 {sS}, 0
    s_lshl_b32 {sT2}, {sKG}, 3
    s_add_u32 {sT2}, {sT2}, {sW}
    s_lshl_b32 {sTMP}, {sL}, 5
    s_add_u32 {sTMP}, {sTMP}, {sT2}
    s_lshl_b32 {sTMP}, {sTMP}, 6
    s_add_u32 {sTMP}, {sTMP}, {sPAR}
    s_lshl_b32 {sO}, {sTMP}, 13
    s_add_u32 {sO}, {sO}, {L.O:#x}
    s_lshl_b32 {sTMP}, {sL}, 1
    s_add_u32 {sTMP}, {sTMP}, {sPAR}
    s_lshl_b32 {sTMP}, {sTMP}, 5
    s_add_u32 {sTMP}, {sTMP}, {sT2}
    s_lshl_b32 {sFO}, {sTMP}, 7
    s_add_u32 {sFO}, {sFO}, {L.FO:#x}
    s_lshl_b32 {sFP}, {sT}, 2
    s_add_u32 {sFP}, {sFP}, {sW}
    s_lshl_b32 {sFP}, {sFP}, 1
    s_lshl_b32 {sTMP}, {sL}, 5
    s_add_u32 {sFP}, {sFP}, {sTMP}
    s_lshl_b32 {sTMP}, {sPAR}, 8
    s_add_u32 {sFP}, {sFP}, {sTMP}
    s_add_u32 {sFP}, {sFP}, {L.FP:#x}
    s_lshl_b32 {sPP}, {sPAR}, 1
    s_add_u32 {sPP}, {sPP}, {sL}
    s_lshl_b32 {sFR}, {sPP}, 7
    s_add_u32 {sFR}, {sFR}, {L.FP + 0x200:#x}
    s_mul_i32 {sPP}, {sPP}, 24
    s_add_u32 {sPP}, {sPP}, {sT}
    s_mul_i32 {sTMP}, {sL}, 12
    s_sub_u32 {sPP}, {sPP}, {sTMP}
    s_mul_i32 {sPP}, {sPP}, 24576
    s_mul_i32 {sTMP}, {sW}, 192
    s_add_u32 {sPP}, {sPP}, {sTMP}
    s_add_u32 {sPP}, {sPP}, {L.PP:#x}
    s_mov_b32 {sBUF}, 0
    s_add_u32 {sPX}, {sPP}, {12 * 24576}
    s_xor_b32 {sPX}, {sPX}, {sPP}
    s_barrier""")
    def ppst(reg):
        for rt in range(2):
            for T in range(3):
                for r in range(4):
                    a(f'buffer_store_dword v{reg(rt, T, r)}, {vST}, {WS}, {[sPP, sTMP][rt]} offen offset:{r * 768 + T * 64}')
    for sl in range(2):
        a(f's_add_u32 {sTMP}, {sPP}, 12288')
        ppst(lambda rt, T, r: 0)
        a(f's_xor_b32 {sPP}, {sPP}, {sPX}')
    a(f'v_lshrrev_b32 v5, 3, {vA}\nv_and_b32 v5, 62, v5')
    LOOP = a.lab('ol')
    a(f'{LOOP}:')
    a(f's_add_u32 {sS}, {sS}, 1\ns_lshl_b32 {sT2}, {sW}, 13\ns_add_u32 {sT2}, {sT2}, {sBUF}\ns_add_u32 {sTMP}, {sO}, 4096\ns_add_u32 {sT3}, {sO}, {4 * 64 * 8192:#x}\ns_add_u32 {sT4}, {sT3}, 4096')
    a(f'v_add_u32 {vB}, {sBUF}, {vA}')
    poll_flag(a, 'v8', TA, sFO, sS, sleep=2)
    t1, t2 = a.tok('o'), a.tok('o')
    for i in range(16):
        if i % 4 == 0: a(f's_add_u32 m0, {sT2}, {(i // 8) * 32768 + ((i // 4) & 1) * 4096}')
        a(f'buffer_load_dwordx4 {vA}, {WS}, {[sO, sTMP, sT3, sT4][i // 4]} offen offset:{(i % 4) * 1024} sc1 lds', tok=t1 if i < 8 else t2)
    rts(a, 8, sS, 0)
    a.wait(t1)
    a('s_barrier')
    AC, HR = 8, 32
    hs = lambda k, rt: vr(HR + 8 * (k % 3) + 4 * rt, 4)
    rd = lambda k, rt: f'ds_read_b128 {hs(k, rt)}, {vB} offset:{(k * 2 + rt) * 1024}'
    st = Stream(a)
    st.add(-1, 'D', *[rd(k, rt) for k in range(3) for rt in range(2)])
    for k in range(32):
        for rt in range(2):
            for T in range(3):
                d = vr(AC + 12 * rt + 4 * T, 4)
                p = st.mf(f'{MF32} {d}, {hs(k, rt)}, {W[(T, k)]}, {"0" if k == 0 else d}')
            if k + 3 < 32: st.add(p, 'D', rd(k + 3, rt))
    st.add(13 * 6, 'X', lambda: a.wait(t2), 's_barrier')
    st.add(100, 'S', f's_add_u32 {sTMP}, {sPP}, 12288')
    bp = a.lab('bp')
    st.add(150, 'D', f'buffer_load_ushort v6, v5, {WS}, {sFR} offen sc1')
    st.add(150, 'S', f's_sub_u32 {sT3}, {sS}, 2'); st.add(151, 'S', f's_max_i32 {sT3}, {sT3}, 0')
    st.add(186, 'S', lambda: a.need('v6')); st.add(186, 'V', f'v_cmp_gt_u32 vcc, {sT3}, v6')
    st.add(189, 'S', f's_cbranch_vccnz {bp}', f'{bp}b:')
    st.emit()
    ppst(lambda rt, T, r: AC + 12 * rt + 4 * T + r)
    a(f'v_mov_b32 v4, {sS}')
    a(f's_add_u32 {sO}, {sO}, 16384\ns_xor_b32 {sPP}, {sPP}, {sPX}\ns_xor_b32 {sBUF}, {sBUF}, 65536')
    a(f's_waitcnt vmcnt(0)\ns_mov_b64 exec, 1\nbuffer_store_short v4, {vA}, {WS}, {sFP} offen\ns_mov_b64 exec, -1')
    rts(a, 8, sS, 1)
    a(f's_cmp_lt_u32 {sS}, 32\ns_cbranch_scc1 {LOOP}')
    a(f"""s_endpgm
    {bp}:
    buffer_load_ushort v6, v5, {WS}, {sFR} offen sc1
    v_cmp_gt_u32 vcc, {sT3}, v6
    s_cbranch_vccz {bp}b
    s_sub_u32 {sBUD}, {sBUD}, 1
    s_cbranch_scc0 {bp}
    s_mov_b32 {sBUD}, 0
    s_branch {bp}b""")

def wsum2(a, x, y, t, u):
    for r in (8, 4, 2, 1):
        a(f'v_add_f32_dpp {x}, {x}, {x} row_ror:{r} {DPPF}\nv_add_f32_dpp {y}, {y}, {y} row_ror:{r} {DPPF}')
    for sw in ('v_permlane16_swap_b32', 'v_permlane32_swap_b32'):
        a(f'v_mov_b32 {t}, {x}\nv_mov_b32 {u}, {y}\n{sw} {t}, {x}\n{sw} {u}, {y}\nv_add_f32 {x}, {x}, {t}\nv_add_f32 {y}, {y}, {u}')

def pack(a, pk, X):
    for i in range(6): a(f'v_cvt_pk_bf16_f32 v{pk + i}, v{X + 2 * i}, v{X + 2 * i + 1}')
def unpack(a, dst, src, n):
    for i in range(n):
        a(f'v_lshlrev_b32 v{dst + 2 * i}, 16, v{src + i}\nv_and_b32 v{dst + 2 * i + 1}, 0xffff0000, v{src + i}')
def rnd1(a, x):
    a(f'v_cvt_pk_bf16_f32 {x}, {x}, {x}\nv_and_b32 {x}, 0xffff0000, {x}')
def pk(a, op, d, x, y, z=None, n=6):
    for i in range(n):
        ops, hi = [], []
        for o in (x, y, z):
            if o is None: continue
            if isinstance(o, tuple): ops.append(vr(o[1], 2)); hi.append(0)
            else: ops.append(vr(o + 2 * i, 2)); hi.append(1)
        a(f'v_pk_{op}_f32 {vr(d + 2 * i, 2)}, ' + ', '.join(ops) + ('' if all(hi) else ' op_sel_hi:[' + ','.join(map(str, hi)) + ']'))

def ln_stats(a, X, Q, T, live, sc):
    m, r, t, u = f'v{T}', f'v{T + 2}', f'v{T + 4}', f'v{T + 5}'
    a(f'v_readfirstlane_b32 {sc}, v{X}\nv_sub_f32 {m}, 0, {sc}' if False else f'v_readfirstlane_b32 {sc}, v{X}\ns_xor_b32 {sc}, {sc}, 0x80000000\nv_mov_b32 {m}, {sc}')
    pk(a, 'add', Q, X, ('b', T))
    a(f'v_pk_mul_f32 {vr(T + 2, 2)}, {vr(Q, 2)}, {vr(Q, 2)}\nv_pk_add_f32 {vr(T, 2)}, {vr(Q, 2)}, {vr(Q + 2, 2)}')
    for i in range(1, 6):
        a(f'v_pk_fma_f32 {vr(T + 2, 2)}, {vr(Q + 2 * i, 2)}, {vr(Q + 2 * i, 2)}, {vr(T + 2, 2)}')
        if i > 1: a(f'v_pk_add_f32 {vr(T, 2)}, {vr(T, 2)}, {vr(Q + 2 * i, 2)}')
    a(f'v_add_f32 {m}, {m}, v{T + 1}\nv_add_f32 {r}, {r}, v{T + 3}\nv_cndmask_b32 {m}, 0, {m}, {live}\nv_cndmask_b32 {r}, 0, {r}, {live}')
    wsum2(a, m, r, t, u)
    a(f'v_mul_f32 {m}, {fbits(1 / 576):#x}, {m}\nv_mul_f32 {r}, {fbits(1 / 576):#x}, {r}\nv_fma_f32 {r}, -{m}, {m}, {r}\nv_max_f32 {r}, 0, {r}\nv_sub_f32 {m}, {sc}, {m}')
    rnd1(a, r); rnd1(a, m)
    a(f'v_add_f32 {r}, {fbits(1e-5):#x}, {r}')
    rnd1(a, r)
    a(f'v_sqrt_f32 {r}, {r}')
    rnd1(a, r)
    a(f'v_rcp_f32 {r}, {r}')

def a_layer(a, X, YP, live, sc, store_x, store_h):
    Q, PKR, T, YF = X + 12, X + 24, X + 30, X + 36
    unpack(a, YF, YP, 6)
    ln_stats(a, X, Q, T, live, sc)
    pk(a, 'add', Q, X, ('b', T))
    pk(a, 'mul', YF, YF, ('b', T + 2))
    pk(a, 'fma', X, Q, YF, X)
    pack(a, YF, X); unpack(a, X, YF, 6)
    store_x(YF)
    ln_stats(a, X, Q, T, live, sc)
    pk(a, 'add', Q, X, ('b', T))
    pack(a, PKR, Q); unpack(a, Q, PKR, 6)
    pk(a, 'mul', Q, Q, ('b', T + 2))
    pack(a, PKR, Q)
    store_h(PKR)

def lane48(a, v16, v8):
    a(f"""s_mov_b32 s24, -1
    s_mov_b32 s25, 0xffff
    v_lshlrev_b32 {v16}, 4, v0
    v_lshlrev_b32 {v8}, 3, v0
    v_mov_b32 v4, 0x80000000
    v_cndmask_b32 {v16}, v4, {v16}, s[24:25]
    v_cndmask_b32 {v8}, v4, {v8}, s[24:25]""")

def gen_red(a):
    v16, v8, vF, vX = 'v1', 'v2', 'v3', 'v16'
    sPAR, sROW, sTMP = 's11', 's12', 's14'
    sJ0, sJ1, sPP, sFP, sRO, sT2, sFH, sT3, sJ, sFR = ['s%d' % i for i in range(52, 62)]
    a('red:')
    a(f"""s_sub_u32 {sPAR}, {sX}, 6
    s_sub_u32 {sROW}, {sT}, 24
    s_lshl_b32 {sROW}, {sROW}, 2
    s_add_u32 {sROW}, {sROW}, {sW}
    s_mov_b32 {sJ0}, 0
    s_mov_b32 {sJ1}, 0
    s_mul_i32 {sPP}, {sPAR}, {48 * 24576:#x}
    s_mul_i32 {sTMP}, {sROW}, 768
    s_add_u32 {sPP}, {sPP}, {sTMP}
    s_add_u32 {sPP}, {sPP}, {L.PP:#x}
    s_lshl_b32 {sFP}, {sPAR}, 8
    s_add_u32 {sFP}, {sFP}, {L.FP:#x}
    s_lshl_b32 {sFR}, {sROW}, 1
    s_add_u32 {sFR}, {sFR}, {sFP}
    s_lshl_b32 {sTMP}, {sPAR}, 5
    s_add_u32 {sTMP}, {sTMP}, {sROW}
    s_mul_i32 {sRO}, {sTMP}, 1152
    s_lshl_b32 {sFH}, {sTMP}, 7
    s_add_u32 {sFH}, {sFH}, {L.FH1 + 0x4000:#x}""")
    initwait(a)
    lane48(a, v16, v8)
    a(f'v_lshlrev_b32 {vF}, 1, v0\nv_min_u32 {vX}, 47, v0\nv_lshlrev_b32 {vX}, 3, {vX}\ns_mul_i32 {sTMP}, {sW}, 36864\nv_add_u32 {vX}, {sTMP}, {vX}')
    LOOP, J0, J1, END = a.lab('rl'), a.lab('r0'), a.lab('r1'), a.lab('re')
    a(f"""{LOOP}:
    s_add_u32 {sTMP}, {sJ0}, {sJ1}
    s_cmp_ge_u32 {sTMP}, 64
    s_cbranch_scc1 {END}
    buffer_load_ushort v4, {vF}, {WS}, {sFP} offen sc1
    buffer_load_ushort v5, {vF}, {WS}, {sFP} offen offset:128 sc1
    v_cmp_ge_u32 vcc, {sJ0}, v4
    s_and_b64 vcc, vcc, s[24:25]
    s_cbranch_vccz {J0}
    v_cmp_ge_u32 vcc, {sJ1}, v5
    s_and_b64 vcc, vcc, s[24:25]
    s_cbranch_vccz {J1}
    s_sub_u32 {sBUD}, {sBUD}, 1
    s_cbranch_scc0 {LOOP}
    {END}:
    s_endpgm""")
    PB, X, XN = 100, 20, 80
    def ldxy(extra):
        a(f's_add_u32 {sTMP}, {sJ}, {L.X1 + extra:#x}\ns_add_u32 {sT2}, {sJ}, {L.Y + extra:#x}')
        for i in range(3): a(f'buffer_load_dwordx2 {vr(XN + 2 * i, 2)}, {v8}, {WS}, {sTMP} offen offset:{384 * i} sc1')
        for i in range(3): a(f'buffer_load_dwordx2 {vr(XN + 6 + 2 * i, 2)}, {v8}, {WS}, {sT2} offen offset:{384 * i} sc1')
    def front(l, sj):
        rts(a, 8, sj, 2 + 64 * l)
        a(f's_and_b32 {sT3}, {sj}, 1\ns_mul_i32 {sT3}, {sT3}, {12 * 24576}\ns_add_u32 {sT3}, {sT3}, {sPP}\ns_mul_i32 {sJ}, {sj}, {2 * 36864}\ns_add_u32 {sJ}, {sJ}, {sRO}')
        for kg in range(4):
            for cg in range(3):
                a(f's_add_u32 {sTMP}, {sT3}, {(24 * l + kg * 3 + cg) * 24576:#x}')
                a(f'buffer_load_dwordx4 {vr(PB + 12 * kg + 4 * cg, 4)}, {v16}, {WS}, {sTMP} offen sc1')
        a(f's_mul_i32 {sTMP}, {sj}, 1152\nv_add_u32 v17, {sTMP}, {vX}')
        if l == 0:
            sk = a.lab('rx')
            a(f's_cmp_lg_u32 {sj}, 0\ns_cbranch_scc1 {sk}')
            ldxy(0)
            a(f's_waitcnt vmcnt(0)\n{sk}:')
            unpack(a, X, XN, 6)
            for i in range(0, 6, 2): a(f'v_mov_b64 {vr(10 + i, 2)}, {vr(XN + 6 + i, 2)}')
        else:
            for i in range(3): a(f'ds_read_b64 {vr(4 + 2 * i, 2)}, v17 offset:{384 * i}')
            unpack(a, X, 4, 6)
        a(f's_add_u32 {sj}, {sj}, 1\nv_mov_b32 v18, {sj}')
        pk(a, 'add', PB, PB, PB + 12); pk(a, 'add', PB + 24, PB + 24, PB + 36)
        a(f's_mov_b64 exec, 1\nbuffer_store_short v18, {vF}, {WS}, {sFR} offen offset:{0x200 + 128 * l}\ns_mov_b64 exec, -1')
        if l == 0: ldxy(2 * 36864)
        pk(a, 'add', PB, PB, PB + 24)
        pack(a, PB + 12, PB); unpack(a, PB, PB + 12, 6)
        pk(a, 'add', X, X, PB)
        pack(a, 4, X)
    a(f'{J0}:')
    front(0, sJ0)
    rts(a, 94, sJ0, 130)
    unpack(a, X, 4, 6)
    def stx(r):
        a('s_mov_b64 exec, s[24:25]')
        for i in range(3): a(f'ds_write_b64 v17, {vr(r + 2 * i, 2)} offset:{384 * i}')
        a('s_mov_b64 exec, -1')
    def sth(r):
        a(f's_add_u32 {sTMP}, {sJ}, {L.H2:#x}')
        for i in range(3): a(f'buffer_store_dwordx2 {vr(r + 2 * i, 2)}, {v8}, {WS}, {sTMP} offen offset:{384 * i} sc1')
    a_layer(a, X, 10, 's[24:25]', sT2, stx, sth)
    rts(a, 94, sJ0, 131)
    a(f's_waitcnt vmcnt(0)\ns_mov_b64 exec, 1\nbuffer_store_dword v18, {vF}, {WS}, {sFH} offen sc1\ns_mov_b64 exec, -1')
    rts(a, 8, sJ0, 1)
    a(f's_branch {LOOP}')
    a(f'{J1}:')
    front(1, sJ1)
    for i in range(3): a(f'buffer_store_dwordx2 {vr(4 + 2 * i, 2)}, {v8}, {OUT}, {sJ} offen offset:{384 * i}')
    rts(a, 8, sJ1, 65)
    a(f's_branch {LOOP}')

def gen_mega(a):
    a(f'.p2align 8\n{NAME}_kernel:')
    a('s_cmp_ge_u32 s2, 256\ns_cbranch_scc1 .mega_end')
    a('s_load_dwordx16 s[16:31], s[0:1], 64')
    a(f'v_lshrrev_b32 v1, 6, v0\nv_and_b32 v0, 63, v0\nv_readfirstlane_b32 {sW}, v1')
    a(f's_getreg_b32 {sX}, hwreg(HW_REG_XCC_ID)\ns_and_b32 {sX}, {sX}, 7\ns_mov_b32 {sBUD}, 200000')
    a('s_waitcnt lgkmcnt(0)')
    srd(a, 4, 30, L.WS_BYTES)
    for d, b in ((32, 16), (36, 18), (40, 20), (44, 22)): srd(a, d, b, 4718592)
    srd(a, 48, 26, 2359296)
    if OPT.get('pt', 0):
        a(f's_cmp_lg_u32 {sW}, 1\ns_cbranch_scc1 .pt\nv_lshlrev_b32 v5, 17, v0')
        for i, s_ in enumerate((WQ, WK, WV, WO)): a(f'buffer_load_dword v{8 + i}, v5, {s_}, 0 offen')
        a('.pt:')
    a(f'v_mov_b32 v4, 0\ns_cmp_lg_u32 {sW}, 0\ns_cbranch_scc1 .tk')
    a(f's_cmp_lt_u32 s2, 32\ns_cselect_b32 s12, -1, 0\nv_and_b32 v5, 31, v0\nv_cmp_gt_u32 vcc, {2 if "q" in ROLES else 0}, v5\nv_mov_b32 v5, s12\nv_cndmask_b32 v5, v5, v4, vcc')
    a(f'v_lshlrev_b32 v6, 2, v0\ns_lshl_b32 s12, s2, 9\nbuffer_store_dword v5, v6, {WS}, s12 offen sc1\nbuffer_store_dword v5, v6, {WS}, s12 offen offset:256 sc1')
    a(f's_lshl_b32 s11, {sX}, 5\nv_mov_b32 v1, s11\nv_mov_b32 v2, 1\ns_mov_b64 exec, 1')
    a('global_atomic_add v3, v1, v2, s[28:29] sc0 sc1\nds_write_b32 v4, v3')
    a('global_atomic_add v1, v2, s[28:29] offset:4 sc1\ns_mov_b64 exec, -1')
    a('.tk:\ns_waitcnt lgkmcnt(0)\ns_barrier\nds_read_b32 v3, v4')
    a(f'v_readfirstlane_b32 {sT}, v3\ns_barrier')
    a(f's_cmp_ge_u32 {sT}, 32\ns_cbranch_scc1 .mega_end')
    e = '.mega_end'
    rts(a, 8, None, 0)
    warm(a)
    a(f's_cmp_lt_u32 {sX}, 2\ns_cbranch_scc1 {"chain" if "c" in ROLES else e}')
    if 'q' in ROLES:
        a(f"""s_sub_u32 s11, {sX}, 6
        s_lshl_b32 s11, s11, 5
        s_add_u32 s11, s11, {sT}
        s_add_u32 s80, s11, 80
        s_add_u32 s81, s11, 64
        s_cmp_ge_u32 {sX}, 6
        s_cbranch_scc1 conv
        s_sub_u32 s11, {sX}, 2
        s_mul_i32 s80, s11, 20
        s_add_u32 s80, s80, {sT}
        s_sub_u32 s80, s80, 12
        s_lshl_b32 s81, s11, 4
        s_add_u32 s81, s81, {sT}
        s_sub_u32 s81, s81, 16
        s_cmp_lt_u32 {sT}, 16
        s_cselect_b32 s81, -1, s81
        s_cmp_ge_u32 {sT}, 12
        s_cbranch_scc1 conv
        roles:""")
        a(f's_cmp_lt_u32 {sX}, 6\ns_cbranch_scc1 qkv')
        a(f's_cmp_lt_u32 {sT}, 24\ns_cbranch_scc1 op')
        a('s_branch red')
    a('.mega_end:\ns_endpgm')
    if 'c' in ROLES: gen_chain(a)
    if 'q' in ROLES:
        gen_conv(a); gen_qkv(a); gen_op(a); gen_red(a)

MF3232 = 'v_mfma_f32_32x32x16_bf16'
def gen_conv(a):
    KVR = 0; HC = 32768; EX = HC
    sU, sJ = 's80', 's81'
    SK, SV, SH = 's[84:87]', 's[88:91]', 's[92:95]'
    TID = 'v90'
    a('conv:')
    a('s_load_dwordx8 s[16:23], s[0:1], 8\ns_load_dwordx2 s[24:25], s[0:1], 40\ns_load_dwordx2 s[26:27], s[0:1], 0')
    a(f's_lshl_b32 s11, {sW}, 6\nv_add_u32 {TID}, s11, v0')
    a('s_waitcnt lgkmcnt(0)')
    srd(a, 84, 16, 2359296)
    srd(a, 88, 18, 2359296)
    a(f's_lshl_b32 s13, {sU}, 2\ns_add_u32 s13, s13, {sW}\ns_lshl_b32 s14, s13, 12\ns_add_u32 s22, s22, s14\ns_addc_u32 s23, s23, 0')
    srd(a, 92, 22, 4096)
    a('s_lshr_b32 s14, s13, 1\ns_lshl_b32 s14, s14, 2\ns_add_u32 s24, s24, s14\ns_addc_u32 s25, s25, 0\ns_load_dword s60, s[24:25], 0')
    def divmod144(q, r, x):
        a(f'v_mul_u32_u24 {q}, 58255, {x}\nv_lshrrev_b32 {q}, 23, {q}\nv_mul_u32_u24 {r}, 144, {q}\nv_sub_u32 {r}, {x}, {r}')
    assert all((i * 58255) >> 23 == i // 144 for i in range(36864))
    a(f's_lshl_b32 s14, {sU}, 8\nv_add_u32 v4, s14, {TID}')
    divmod144('v2', 'v3', 'v4')
    a('v_lshlrev_b32 v4, 5, v3\nv_mul_u32_u24 v2, 9216, v2\nv_lshl_add_u32 v2, v3, 3, v2\nv_subrev_u32 v1, 3456, v2\nv_add_u32 v3, 4608, v2')
    srd(a, 52, 20, 4608)
    a('buffer_load_dwordx4 v[76:79], v4, s[52:55], 0 offen\nbuffer_load_dwordx4 v[80:83], v4, s[52:55], 0 offen offset:16')
    KB, VB = 10, 32
    for r in range(11):
        vo, im = ('v1', r * 1152) if r < 3 else (('v2', (r - 3) * 1152) if r < 7 else ('v3', (r - 7) * 1152))
        a(f'buffer_load_dwordx2 {vr(KB + 2 * r, 2)}, {vo}, {SK}, 0 offen offset:{im}')
    for r in range(8):
        vo, im = ('v2', r * 1152) if r < 4 else ('v3', (r - 4) * 1152)
        a(f'buffer_load_dwordx2 {vr(VB + 2 * r, 2)}, {vo}, {SV}, 0 offen offset:{im}')
    a(f'v_lshlrev_b32 v5, 4, v0\ns_mul_i32 s11, {sW}, 17408\ns_add_u32 s11, s11, {HC}')
    th = a.tok('h')
    for i in range(17):
        c0 = (64 * i) // 260; thr = 260 * (c0 + 1) - 64 * i
        a(f'v_add_u32 v6, {(1024 * i - 62 - 4158 * c0) & 0xffffffff:#x}, v5')
        if thr < 64:
            a(f'v_subrev_u32 v7, 4158, v6\nv_cmp_le_u32 vcc, {thr}, v0\nv_cndmask_b32 v6, v6, v7, vcc')
        a(f's_add_u32 m0, s11, {i * 1024}')
        a(f'buffer_load_dwordx4 v6, {SH}, 0 offen lds', tok=th)
    a('v_bfe_u32 v6, v0, 3, 2\nv_and_b32 v7, 7, v0\nv_add_u32 v8, v6, v7\nv_subrev_u32 v8, 7, v8\nv_lshlrev_b32 v8, 1, v8')
    a(f'buffer_load_ushort v9, v8, {SH}, 0 offen')
    a('v_mul_u32_u24 v6, 4160, v6\nv_lshl_add_u32 v6, v7, 1, v6\nv_add_u32 v8, s11, v6')
    a(f's_lshl_b32 s12, {sW}, 13')
    a('s_waitcnt lgkmcnt(0)')
    a('s_lshl_b32 s61, s60, 16\ns_and_b32 s60, s60, 0xffff0000\ns_bitcmp1_b32 s13, 0\ns_cselect_b32 s60, s60, s61')
    a('v_lshlrev_b32 v7, 6, v0\nv_add_u32 v7, s12, v7\nv_add_u32 v6, s12, v5')
    KF, AC, SW = 52, 64, 84
    for ch in range(4):
        un = (lambda d, s: f'v_lshlrev_b32 v{d}, 16, v{s}') if ch % 2 == 0 else (lambda d, s: f'v_and_b32 v{d}, 0xffff0000, v{s}')
        unpack(a, SW, 76 + 2 * ch, 2)
        for r in range(11): a(un(KF + r, KB + 2 * r + ch // 2))
        for r in range(8):
            a(f'v_mul_f32 v{AC + r}, v{SW + 3}, v{KF + r}')
            for j in range(1, 4): a(f'v_fmac_f32 v{AC + r}, v{SW + 3 - j}, v{KF + r + j}')
        for r in range(8): a(un(KF + r, VB + 2 * r + ch // 2))
        pk(a, 'mul', AC, AC, KF, n=4)
        for i in range(4): a(f'v_cvt_pk_bf16_f32 v{72 + i}, v{AC + 7 - 2 * i}, v{AC + 6 - 2 * i}')
        a(f'ds_write_b128 v7, v[72:75] offset:{KVR + ch * 16}')
    for j in range(4): a(f'ds_read_b128 {vr(16 + 4 * j, 4)}, v6 offset:{KVR + j * 1024}')
    a(f's_lshl_b32 s14, {sU}, 2\ns_add_u32 s14, s14, {sW}\ns_lshl_b32 s14, s14, 6\nv_lshrrev_b32 v4, 2, v0\nv_add_u32 v4, s14, v4\nv_and_b32 v3, 3, v0\nv_lshlrev_b32 v3, 4, v3\ns_mov_b32 s14, {L.KT:#x}')
    for j in range(4):
        divmod144('v1', 'v2', 'v4')
        a(f'v_lshl_add_u32 v1, v1, 6, v3\nv_lshl_add_u32 v1, v2, 14, v1\nv_add_u32 v4, 16, v4')
        a(f'buffer_store_dwordx4 {vr(16 + 4 * j, 4)}, v1, {WS}, s14 offen sc1')
    def allflag(base):
        sk, lp = a.lab('af'), a.lab('al')
        a(f's_waitcnt vmcnt(0)\ns_barrier\ns_cmp_lg_u32 {sW}, 0\ns_cbranch_scc1 {sk}')
        a(f's_lshl_b32 s14, {sU}, 7\ns_add_u32 s14, s14, {L.FA:#x}\nv_mov_b32 v12, {base}\ns_mov_b64 exec, 1\nbuffer_store_dword v12, v5, {WS}, s14 offen sc1')
        return sk, lp
    def allwait(sk, lp, base):
        a(f"""s_mov_b32 exec_lo, -1
        s_mov_b32 exec_hi, 0xffff
        v_mul_u32_u24 v15, 384, v0
        s_mov_b32 s14, {L.FA:#x}
        {lp}:
        s_sleep 4
        buffer_load_dword v12, v15, {WS}, s14 offen sc1
        buffer_load_dword v13, v15, {WS}, s14 offen offset:128 sc1
        buffer_load_dword v14, v15, {WS}, s14 offen offset:256 sc1
        v_min3_u32 v12, v12, v13, v14
        v_cmp_gt_u32 vcc, {base}, v12
        s_cbranch_vccz {sk}
        s_sub_u32 {sBUD}, {sBUD}, 1
        s_cbranch_scc0 {lp}
        s_mov_b32 {sBUD}, 0
        {sk}:
        s_mov_b64 exec, -1
        s_barrier""")
    iw = a.lab('iw')
    a(f's_cmp_lg_u32 {sW}, 0\ns_cbranch_scc1 {iw}')
    initwait(a)
    a(f'{iw}:')
    rts(a, 10, None, 204)
    sk, lp = allflag(1)
    allwait(sk, lp, 1)
    rts(a, 10, None, 205)
    a(f's_lshl_b32 s14, {sU}, 14\ns_add_u32 s14, s14, {L.KT:#x}\nv_lshlrev_b32 v4, 4, {TID}')
    for j in range(4): a(f'buffer_load_dwordx4 {vr(16 + 4 * j, 4)}, v4, {WS}, s14 offen sc1\ns_add_u32 s14, s14, 4096')
    for r in range(4): a(f'v_mov_b32 v{48 + r}, 0')
    for i in range(3): a(f'ds_write_b128 v6, v[48:51] offset:{KVR + 5120 + 1024 * i}')
    a(f'v_lshrrev_b32 v6, 2, {TID}\nv_sub_u32 v6, 63, v6\nv_lshrrev_b32 v7, 2, v6\nv_mul_u32_u24 v7, 80, v7\nv_and_b32 v6, 3, v6\nv_lshl_add_u32 v7, v6, 4, v7\nv_and_b32 v6, 3, v0\nv_lshl_add_u32 v7, v6, 13, v7')
    for j in range(4): a(f'ds_write_b128 v7, {vr(16 + 4 * j, 4)} offset:{KVR + (3 - j) * 16 * 80}')
    a.wait(th)
    a('ds_write_b16 v8, v9 offset:48')
    rts(a, 10, None, 200)
    a('v_and_b32 v6, 3, v0\nv_mul_u32_u24 v1, 4160, v6\nv_bfe_u32 v6, v0, 2, 3\nv_lshl_add_u32 v1, v6, 3, v1\nv_lshrrev_b32 v7, 5, v0\nv_lshl_add_u32 v1, v7, 4, v1\nv_add_u32 v1, s11, v1')
    a('v_and_b32 v6, 31, v0\nv_sub_u32 v6, 31, v6\nv_mul_u32_u24 v3, 80, v6\nv_add_u32 v3, s12, v3\nv_lshl_add_u32 v2, v7, 4, v3')
    a('v_lshlrev_b32 v7, 3, v7\nv_sub_u32 v3, v3, v7')
    srd(a, 84, 26, 2359296)
    lane48(a, 'v91', 'v92')
    a(f's_lshl_b32 s15, {sJ}, 2\ns_add_u32 s15, s15, {sW}\ns_and_b32 s15, s15, 511\ns_lshl_b32 s62, {sJ}, 7\ns_add_u32 s62, s62, {L.FH1:#x}\ns_mul_i32 s15, s15, 1152')
    XR = 100
    for r in range(4):
        a(f's_add_u32 s14, s15, {r * 512 * 1152}')
        for i in range(3): a(f'buffer_load_dwordx2 {vr(XR + 6 * r + 2 * i, 2)}, v92, {SK}, s14 offen offset:{384 * i}')
    if OPT.get('wp', 1):
        a(f's_mul_i32 s14, {sU}, 57\ns_lshr_b32 s14, s14, 11\ns_mul_i32 s63, s14, 144\ns_sub_u32 s63, s13, s63\ns_lshl_b32 s63, s63, 15')
        a('s_mov_b64 s[56:57], s[32:33]\ns_cmp_eq_u32 s14, 1\ns_cselect_b64 s[56:57], s[36:37], s[56:57]\ns_cmp_eq_u32 s14, 2\ns_cselect_b64 s[56:57], s[40:41], s[56:57]')
        a('s_cmp_eq_u32 s14, 3\ns_cselect_b64 s[56:57], s[44:45], s[56:57]\ns_mov_b32 s58, 4718592\ns_mov_b32 s59, 0x20000')
        assert all((u * 57) >> 11 == u // 36 for u in range(144))
        sh = OPT.get('ws', 6)
        a(f'v_lshlrev_b32 v94, {sh}, v0')
        for i in range(32768 >> (sh + 6)): a(f'buffer_load_dword v95, v94, s[56:59], s63 offen\ns_add_u32 s63, s63, {64 << sh}')
    a('s_waitcnt lgkmcnt(0)\ns_barrier')
    D1, D0, FR = 16, 32, 128
    def rd(g, u):
        b = FR + 16 * g
        bo = KVR + 80 * (u >> 1) + 32 * (u & 1)
        return [f'ds_read_b64 {vr(b, 2)}, v1 offset:{u * 32}', f'ds_read_b64 {vr(b + 2, 2)}, v1 offset:{u * 32 + 8}', f'ds_read_b128 {vr(b + 8, 4)}, v2 offset:{bo}',
                f'ds_read_b128 {vr(b + 12, 4)}, v2 offset:{bo + 2560}', f'ds_read_b64 {vr(b + 4, 2)}, v1 offset:{u * 32 + 2048}', f'ds_read_b64 {vr(b + 6, 2)}, v1 offset:{u * 32 + 2056}']
    for g in range(2):
        for x in rd(g, g): a(x)
    for r in range(D1, D1 + 32, 2): a(f'v_mov_b64 {vr(r, 2)}, 0')
    lp = a.lab('cv')
    a(f's_mov_b32 s14, 16\n{lp}:')
    for g in range(4):
        b = FR + 16 * g
        f = rd((g + 2) % 4, g + 2)
        a(f'{MF3232} {vr(D1, 16)}, {vr(b, 4)}, {vr(b + 8, 4)}, {vr(D1, 16)}')
        a(f[0]); a(f[1])
        a(f'{MF3232} {vr(D0, 16)}, {vr(b, 4)}, {vr(b + 12, 4)}, {vr(D0, 16)}')
        a(f[2]); a(f[3])
        a(f'{MF3232} {vr(D1, 16)}, {vr(b + 4, 4)}, {vr(b + 12, 4)}, {vr(D1, 16)}')
        a(f[4]); a(f[5])
    a(f'v_add_u32 v1, 128, v1\nv_add_u32 v2, 160, v2\ns_sub_u32 s14, s14, 1\ns_cmp_lg_u32 s14, 0\ns_cbranch_scc1 {lp}')
    a('s_waitcnt lgkmcnt(0)')
    for N in (0, 1):
        for rq in range(4): a(f'ds_read_b64 {vr(48 + 8 * N + 2 * rq, 2)}, v3 offset:{KVR + (1 - N) * 2560 + 56 - 16 * rq}')
    a('s_barrier')
    a(f'v_and_b32 v6, 15, v0\nv_mul_u32_u24 v6, 1040, v6\nv_lshrrev_b32 v7, 5, v0\nv_lshl_add_u32 v6, v7, 7, v6\nv_bfe_u32 v7, v0, 4, 1\nv_lshl_add_u32 v6, v7, 3, v6\ns_lshl_b32 s14, {sW}, 5\nv_add_u32 v6, s14, v6')
    for N in (0, 1):
        D = D1 if N else D0
        for rq in range(4):
            s0, s1 = 48 + 8 * N + 2 * rq, 49 + 8 * N + 2 * rq
            a(f'v_and_b32 v64, 0xffff0000, v{s1}\nv_lshlrev_b32 v65, 16, v{s1}\nv_and_b32 v66, 0xffff0000, v{s0}\nv_lshlrev_b32 v67, 16, v{s0}')
            for r in range(4): a(f'v_fmac_f32 v{D + 4 * rq + r}, s60, v{64 + r}')
            a(f'v_cvt_pk_bf16_f32 v68, v{D + 4 * rq}, v{D + 4 * rq + 1}\nv_cvt_pk_bf16_f32 v69, v{D + 4 * rq + 2}, v{D + 4 * rq + 3}')
            a(f'ds_write_b64 v6, v[68:69] offset:{EX + N * 16 + rq * 256}')
    a(f's_mul_i32 s14, {sW}, 1040\nv_add_u32 v6, s14, v5')
    a(f'v_lshrrev_b32 v7, 3, {TID}\nv_mul_u32_u24 v7, 18432, v7\nv_and_b32 v8, 7, v0\nv_lshl_add_u32 v7, v8, 4, v7')
    a(f's_lshl_b32 s14, {sU}, 7\ns_add_u32 s14, s14, {L.YB:#x}')
    a('s_waitcnt lgkmcnt(0)\ns_barrier')
    for j in range(4): a(f'ds_read_b128 {vr(16 + 4 * j, 4)}, v6 offset:{EX + j * 4 * 1040}')
    for j in range(4):
        a(f'buffer_store_dwordx4 {vr(16 + 4 * j, 4)}, v7, {WS}, s14 offen sc1\ns_add_u32 s14, s14, {32 * 18432}')
    rts(a, 10, None, 201)
    sk, lp = allflag(2)
    a(f's_cmp_eq_u32 {sJ}, -1\ns_cbranch_scc1 {sk}')
    allwait(sk, lp, 2)
    a(f's_cmp_eq_u32 {sJ}, -1\ns_cbranch_scc1 roles')
    rts(a, 10, None, 202)
    RB = 20480
    a(f's_mul_i32 s14, {sJ}, 18432\ns_add_u32 s14, s14, {L.YB:#x}\ns_mul_i32 s11, {sW}, 4608\ns_add_u32 s14, s14, s11\ns_mov_b32 m0, s11')
    for i in range(4): a(f'buffer_load_dwordx4 v5, {WS}, s14 offen offset:{i * 1024} sc1 lds')
    a('s_add_u32 m0, s11, 4096\ns_add_u32 s14, s14, 4096\ns_mov_b64 exec, 0xffffffff')
    a(f'buffer_load_dwordx4 v5, {WS}, s14 offen sc1 lds\ns_mov_b64 exec, -1')
    a('v_lshlrev_b32 v6, 3, v0\nv_add_u32 v7, s11, v6')
    a(f'v_and_b32 v8, 15, v0\nv_mul_u32_u24 v8, 1168, v8\nv_lshrrev_b32 v9, 4, v0\nv_lshl_add_u32 v8, v9, 3, v8\ns_mul_i32 s14, {sW}, 288\nv_add_u32 v8, s14, v8')
    a(f's_mul_i32 s14, {sW}, 1168\nv_add_u32 v6, s14, v6\ns_cmp_eq_u32 {sW}, 0\ns_cselect_b32 s64, 1, 0\ns_mov_b32 s65, 0')
    a('s_waitcnt vmcnt(0)')
    for i in range(9): a(f'ds_read_b64_tr_b16 {vr(16 + 2 * i, 2)}, v7 offset:{i * 512}')
    for i in range(9): a(f'ds_write_b64 v8, {vr(16 + 2 * i, 2)} offset:{RB + i * 32}')
    a('s_waitcnt lgkmcnt(0)\ns_barrier')
    def st(base):
        def f(r):
            a(f's_add_u32 s14, s15, {base:#x}')
            for i in range(3): a(f'buffer_store_dwordx2 {vr(r + 2 * i, 2)}, v92, {WS}, s14 offen offset:{384 * i} sc1')
        return f
    lp = a.lab('ln')
    a(f's_mov_b32 s13, 0\n{lp}:')
    for i in range(3): a(f'ds_read_b64 {vr(10 + 2 * i, 2)}, v6 offset:{RB + 384 * i}')
    unpack(a, 20, XR, 6)
    for i in range(18): a(f'v_mov_b32 v{XR + i}, v{XR + 6 + i}')
    st(L.Y)(10)
    a_layer(a, 20, 10, 's[24:25]', 's12', st(L.X1), st(L.H1))
    rts(a, 10, 's13', 206)
    a(f's_add_u32 s13, s13, 1\ns_lshl_b32 s14, s13, 3\nv_mov_b32 v93, s14\ns_waitcnt vmcnt(0)\ns_barrier\ns_mov_b64 exec, s[64:65]\nbuffer_store_dword v93, v5, {WS}, s62 offen sc1\ns_mov_b64 exec, -1')
    a(f'v_add_u32 v6, {4 * 1168}, v6\ns_add_u32 s15, s15, {512 * 1152}\ns_cmp_lt_u32 s13, 4\ns_cbranch_scc1 {lp}')
    rts(a, 10, None, 203)
    a('s_barrier\ns_branch roles')

def kd(name, vg, acc):
    return f'''.amdhsa_kernel {name}
  .amdhsa_next_free_vgpr {vg}
  .amdhsa_next_free_sgpr 102
  .amdhsa_accum_offset {acc}
  .amdhsa_group_segment_fixed_size 0
  .amdhsa_kernarg_size 128
  .amdhsa_user_sgpr_count 2
  .amdhsa_user_sgpr_kernarg_segment_ptr 1
  .amdhsa_system_sgpr_workgroup_id_x 1
  .amdhsa_float_denorm_mode_32 3
.end_amdhsa_kernel
'''

def build():
    a = Asm()
    gen_mega(a)
    k = NAME + '_kernel'
    body = a.finish([k])
    ref = open(f'cdna_kernels/{NAME}.s.ref').read().split('\n')
    hdr = [l for l in ref if l.startswith(';') and 'aunch' not in l and 'grid=' not in l]
    out = '\n'.join(hdr + ['; @launch grid=(256,1,1) block=(256,1,1) lds=163840']) + '\n.amdgcn_target "amdgcn-amd-amdhsa--gfx950"\n.text\n'
    out += f'.globl {k}\n.type {k},@function\n' + body + '.code_end:\n.section .rodata,"a"\n.p2align 6\n' + kd(k, 512, 256)
    return out

if __name__ == '__main__':
    import argparse
    ap = argparse.ArgumentParser()
    ap.add_argument('-o', default=f'cdna_kernels/{NAME}.s')
    ap.add_argument('--debug', action='store_true')
    ap.add_argument('--roles', default='cqor')
    ap.add_argument('--launches', default='conv,ln1,mega')
    ap.add_argument('--timeline', action='store_true')
    ap.add_argument('--spos', type=int, default=None)
    ap.add_argument('--fixkv', action='store_true')
    ap.add_argument('--light', action='store_true')
    ap.add_argument('--opt', default='')
    ap.add_argument('--prof', default='')
    ap.add_argument('--steps', type=int, default=64)
    ar = ap.parse_args()
    NSTEPS = ar.steps; TIMELINE = ar.timeline; SPOS = ar.spos; FIXKV = ar.fixkv; LIGHT = ar.light; PROF = [int(x) for x in ar.prof.split(',') if x]
    OPT.update({k: int(v) for k, v in (x.split('=') for x in ar.opt.split(',') if x)})
    DEBUG = ar.debug; ROLES = ar.roles
    open(ar.o, 'w').write(build())
```
